```python
import torch

def _softmax(x, axis=-1):
    return torch.softmax(x, dim=axis)

def _gelu(x):
    return torch.nn.functional.gelu(x, approximate='tanh')

def _silu(x):
    return torch.nn.functional.silu(x)

def _sigmoid(x):
    return torch.sigmoid(x)

def _layernorm(x, axis=-1, eps=1e-05):
    m = x.mean(dim=axis, keepdim=True)
    v = x.var(dim=axis, keepdim=True, unbiased=False)
    return (x - m) / torch.sqrt(v + eps)

def _scatter_add(tgt, idx, src, axis=0):
    return tgt.clone().index_add_(axis, idx, src)

def _segment_sum(src, seg, n):
    out = torch.zeros((n,) + src.shape[1:], dtype=src.dtype)
    return out.index_add_(0, seg, src)

def _pad(x, pw):
    flat = tuple((v for pair in reversed(pw) for v in pair))
    return torch.nn.functional.pad(x, flat)
kernel_name = 'recurrent_scan__linear_attn_block__mixer_gmlp__prompt'

def setup_inputs():

    _w = lambda a: (lambda t: t.to(torch.bfloat16) if t.is_floating_point() else t)(torch.as_tensor(a))

    def _A_setup():
        B, S, D = (1, 2048, 1024)
        return {'x': _w((lambda *s: torch.randn(*s, dtype=torch.bfloat16) * 0.05)(B, S, D)), 'wqkv': _w((lambda *s: torch.randn(*s, dtype=torch.bfloat16) * 0.05)(D, 3 * D)), 'wo': _w((lambda *s: torch.randn(*s, dtype=torch.bfloat16) * 0.05)(D, D))}
    _A_in = _A_setup()

    def _B_setup():
        B, S, D, F = (1, 2048, 1024, 3584)
        Fh = F // 2
        return {'x': _w((lambda *s: torch.randn(*s, dtype=torch.bfloat16) * 0.05)(B, S, D)), 'w_in': _w((lambda *s: torch.randn(*s, dtype=torch.bfloat16) * 0.4)(D, 2 * Fh)), 'w_sp': _w(0.01 * (lambda *s: torch.randn(*s, dtype=torch.bfloat16) * 0.4)(S, S)), 'b_sp': _w(1.0 + 0.01 * (lambda *s: torch.randn(*s, dtype=torch.bfloat16) * 0.05)(S)), 'w_out': _w((lambda *s: torch.randn(*s, dtype=torch.bfloat16) * 0.05)(Fh, D))}
    _B_in = _B_setup()
    return {'A_x': _A_in['x'], 'A_wqkv': _A_in['wqkv'], 'A_wo': _A_in['wo'], 'B_x': _B_in['x'], 'B_w_in': _B_in['w_in'], 'B_w_sp': _B_in['w_sp'], 'B_b_sp': _B_in['b_sp'], 'B_w_out': _B_in['w_out']}

def reference(A_x, A_wqkv, A_wo, B_x, B_w_in, B_w_sp, B_b_sp, B_w_out):

    def _A_ref(x, wqkv, wo):
        B, S, D = x.shape
        H = 32
        Dh = D // H
        qkv = (lambda x, *d: x.permute(*d))((x @ wqkv).reshape(B, S, 3, H, Dh), 2, 0, 3, 1, 4)
        q, k, v = (qkv[0], qkv[1], qkv[2])
        phi = lambda t: torch.where(t > 0, t + 1, torch.exp(t)) + 1e-06
        pq, pk = (phi(q), phi(k))
        kv = torch.einsum('bhsd,bhse->bhde', pk, v)
        z = torch.einsum('bhsd->bhd', pk)
        num = torch.einsum('bhqd,bhde->bhqe', pq, kv)
        den = torch.einsum('bhqd,bhd->bhq', pq, z)[..., None] + 1e-06
        o = num / den
        return (lambda x, *d: x.permute(*d))(o, 0, 2, 1, 3).reshape(B, S, D) @ wo

    def _B_ref(x, w_in, w_sp, b_sp, w_out):
        B, S, D = x.shape
        F = w_in.shape[-1]
        Fh = F // 2
        z = _gelu(torch.einsum('bsd,df->bsf', x, w_in))
        z1 = z[..., :Fh].clone()
        z2 = _layernorm(z[..., Fh:], axis=-1)
        g = torch.einsum('ts,bsf->btf', w_sp, z2) + b_sp[None, :, None]
        return torch.einsum('bsf,fd->bsd', z1 * g, w_out)
    x = A_x
    xn = _layernorm(x, axis=-1)
    s = _A_ref(xn, A_wqkv, A_wo)
    g = _silu(_B_ref(xn, B_w_in, B_w_sp, B_b_sp, B_w_out))
    return x + s * g
```

```python
import re

KNAME = 'recurrent_scan__linear_attn_block__mixer_gmlp__prompt'

HEADER = """; Kernarg layout for this problem (88 bytes, ptrs only, base s[0:1]):
"""

class Kernel:
    def __init__(self, name, grid, block, lds, vgpr=256, sgpr=102, accum=None):
        self.name = name; self.grid = grid; self.block = block; self.lds = lds
        self.vgpr = vgpr; self.sgpr = sgpr; self.accum = accum
        self.lines = []
        self._lab = 0
    def __call__(self, s):
        for l in s.split('\n'):
            l = l.strip()
            if not l: continue
            if l.endswith(':'):
                self.lines.append(l)
            else:
                self.lines.append('    ' + l)
    def label(self, base='L'):
        self._lab += 1
        return f'{self.name}_{base}_{self._lab}'
    def text(self):
        t = f'.globl {self.name}\n.p2align 8\n.type {self.name},@function\n{self.name}:\n'
        t += '\n'.join(self.lines) + '\n'
        return t
    def desc(self):
        acc = self.accum if self.accum is not None else min(256, (self.vgpr + 3) // 4 * 4)
        return f""".amdhsa_kernel {self.name}
  .amdhsa_next_free_vgpr {self.vgpr}
  .amdhsa_next_free_sgpr {self.sgpr}
  .amdhsa_accum_offset {acc}
  .amdhsa_group_segment_fixed_size 0
  .amdhsa_kernarg_size 88
  .amdhsa_user_sgpr_count 2
  .amdhsa_user_sgpr_kernarg_segment_ptr 1
  .amdhsa_system_sgpr_workgroup_id_x 1
  .amdhsa_float_denorm_mode_32 3
.end_amdhsa_kernel
"""

def build(kernels, launches=None):
    if launches is None: launches = kernels
    out = HEADER
    for k in launches:
        out += f'; @launch kernel={k.name} grid=({k.grid},1,1) block=({k.block},1,1) lds={k.lds}\n'
    out += '.amdgcn_target "amdgcn-amd-amdhsa--gfx950"\n.text\n'
    for k in kernels:
        out += k.text()
    out += '.section .rodata,"a"\n'
    for k in kernels:
        out += '.p2align 6\n' + k.desc()
    return out
```

```python
from asmlib import *
from sched import *
WS_XN = 0
WS_PQ = 4 << 20
WS_O = 8 << 20
WS_Z1 = 12 << 20
WS_Z2 = 20 << 20
WS_U = 28 << 20
WS_KVP = 36 << 20
WS_ST = 38 << 20
WS_FLAG = 39 << 20
WS_S = 40 << 20
WS_RAW = 64 << 20
WS_RES = 128 << 20

def srd(k, s, slot, size):
    k(f's_mov_b32 s{s+2}, {size}\ns_mov_b32 s{s+3}, 0x20000')

def f2u(x):
    import struct
    return struct.unpack('<I', struct.pack('<f', x))[0]

def round_bf16(k, v, tmp=None):
    k(f'v_cvt_pk_bf16_f32 v{v}, v{v}, v{v}\nv_lshlrev_b32 v{v}, 16, v{v}')

def ln_finish(k, vs, vq, n, vt):
    k(f'''
    v_mul_f32 v{vs}, {f2u(1.0/n):#x}, v{vs}
    v_mul_f32 v{vq}, {f2u(1.0/n):#x}, v{vq}
    v_fma_f32 v{vq}, -v{vs}, v{vs}, v{vq}
    v_max_f32 v{vq}, 0, v{vq}
    ''')
    round_bf16(k, vq)
    k(f'v_add_f32 v{vq}, {f2u(1e-5):#x}, v{vq}')
    round_bf16(k, vq)
    k(f'v_sqrt_f32 v{vq}, v{vq}')
    round_bf16(k, vs)
    round_bf16(k, vq)
    k(f'v_rcp_f32 v{vq}, v{vq}\ns_nop 0')

def stamp_begin(k, opt, s0=90):
    if opt.get('stamp'): k(f's_memrealtime s[{s0}:{s0+1}]')

def stamp(k, opt, idx, sws, vt, s0=90):
    if not opt.get('stamp'): return
    k(f'''s_memrealtime s[{s0}:{s0+1}]
    s_waitcnt lgkmcnt(0)
    v_mov_b32 v{vt}, s{s0}
    s_lshl_b32 s{s0+1}, s2, 5
    s_add_u32 s{s0+1}, s{s0+1}, {WS_RES + opt['stamp_slot'] * 8192 + idx * 4}
    v_mov_b32 v{vt+1}, 0
    buffer_store_dword v{vt}, v{vt+1}, s[{sws}:{sws+3}], s{s0+1} offen''')
```

```python
from common import *
STG = 32768
A_OFF, B_OFF = 0, 16384
def acc(ja, jb): return (ja * 4 + jb) * 4
def FA(s, j): return 64 + s * 16 + j * 4
def FB(s, j): return 96 + s * 16 + j * 4
V0 = 128

class Core:
    S_LB = 20
    def m0(self, st, off): return ('i', f's_add_u32 m0, s{self.S_LB}, {(st & 3) * STG + off}')
    def dmas(self, st):
        return ([self.m0(st, A_OFF)] + [('vm', self.a_dma(st, i), ('D', st)) for i in range(4)],
                [self.m0(st, B_OFF)] + [('vm', self.b_dma(st, i), ('D', st)) for i in range(4)])
    def reads(self, st, kk):
        A = lambda j: [('lds', t, ('A', st, kk, j)) for t in self.a_read(st, kk, j)]
        B = lambda j: [('lds', self.b_read(st, kk, j), ('B', st, kk, j))]
        first = 0 if True else 3
        return B(0) + A(0) + B(1) + B(2) + B(3) + A(1) + A(2) + A(3)
    def stage(self, st, nst, extra=None):
        gaps = [[] for _ in range(32)]; pre = [[] for _ in range(32)]
        for n, r in enumerate(self.reads(st, 1)): gaps[n].append(r)
        if st + 1 < nst:
            gaps[17] += [('wlv', [('A', st, 1, 3)], ('D', st + 1)), ('i', 's_barrier')]
            for n, r in enumerate(self.reads(st + 1, 0)): gaps[18 + n].append(r)
        if st + 4 < nst:
            a, _ = self.dmas(st + 4)
            gaps[18].append(a[0])
            for n, p in enumerate((19, 22, 25, 28)): gaps[p].append(a[1 + n])
            gaps[30] += self.inc_a()
        if st + 3 < nst and st >= 1:
            _, b = self.dmas(st + 3)
            gaps[0].append(b[0])
            for n, p in enumerate((1, 5, 9, 13)): gaps[p].append(b[1 + n])
            gaps[15] += self.inc_b()
        seen = set(); ops = []
        for m in range(32):
            kk = m >> 4; ja = (m >> 2) & 3; jb = m & 3
            if ja & 1: jb = 3 - jb
            need = [t for t in (('A', st, kk, ja), ('B', st, kk, jb)) if t not in seen]
            seen.update(need)
            if need: ops.append(('wl', need))
            d = acc(ja, jb); a = FA(kk, ja); b = FB(kk, jb)
            ops.append(('i', f'v_mfma_f32_16x16x32_bf16 v[{d}:{d+3}], v[{a}:{a+3}], v[{b}:{b+3}], v[{d}:{d+3}]'))
            ops += gaps[m]
            if extra and m in extra: ops += extra[m]
        return ops
    def prologue_ops(self, mid):
        ops = []
        for st in range(4):
            a, b = self.dmas(st)
            ops += [a[0], ('i', 's_nop 0')] + a[1:] + self.inc_a() + [b[0], ('i', 's_nop 0')] + b[1:] + self.inc_b()
        ops += mid
        for r in range(64): ops.append(('i', f'v_mov_b32 v{r}, 0'))
        ops += [('wv', ('D', 0)), ('i', 's_barrier')]
        ops += self.reads(0, 0)
        return ops
    def run(self, k, nst, q, mid, extras, s_it):
        t, _ = resolve(self.prologue_ops(mid) + self.stage(0, nst), q)
        k('\n'.join(t))
        first_special = min([nst - 4] + list(extras.keys()))
        nit = (first_special - 1) // 4
        body = lambda it: sum([self.stage(1 + 4 * it + x, nst) for x in range(4)], [])
        if nit > 0:
            lab = k.label('loop')
            k(f's_mov_b32 s{s_it}, {nit}')
            t = loop_resolve(body, range(nit), q)
            k(f'.p2align 4\n{lab}:')
            k('\n'.join(t))
            k(f's_sub_u32 s{s_it}, s{s_it}, 1\ns_cmp_lg_u32 s{s_it}, 0\ns_cbranch_scc1 {lab}')
        ops = []
        for st in range(1 + 4 * nit, nst): ops += self.stage(st, nst, extras.get(st))
        t, _ = resolve(ops, q)
        k('\n'.join(t))
```

```python
from common import *
def make_k0(name, opt):
    k = Kernel(name, 256, 512, 1024, vgpr=64, sgpr=96)
    SX, SW, SQ, SI = 4, 8, 12, 16
    k(f'''
    s_cmp_ge_u32 s2, 256
    s_cbranch_scc1 {name}_end
    s_load_dwordx2 s[{SX}:{SX+1}], s[0:1], 0
    s_load_dwordx2 s[{SW}:{SW+1}], s[0:1], 80
    s_load_dwordx2 s[{SQ}:{SQ+1}], s[0:1], 8
    s_load_dwordx2 s[{SI}:{SI+1}], s[0:1], 32
    v_lshrrev_b32 v1, 6, v0
    v_and_b32 v63, 63, v0
    ''')
    srd(k, SX, 0, 4 << 20); srd(k, SW, 0, 0x10000000); srd(k, SQ, 0, 6144 * 1024); srd(k, SI, 0, 7168 * 1024)
    k(f'''
    v_readfirstlane_b32 s20, v1             ; wave
    v_and_b32 v2, 7, v63                    ; i
    v_lshrrev_b32 v3, 3, v63                ; cc
    v_lshlrev_b32 v4, 4, v3
    v_lshl_add_u32 v4, v2, 11, v4           ; i*2048 + cc*16
    s_lshl_b32 s21, s2, 14
    s_lshl_b32 s22, s20, 8                  ; wave*256 B
    s_add_u32 s21, s21, s22
    s_waitcnt lgkmcnt(0)
    buffer_load_dwordx4 v[8:11], v4, s[{SX}:{SX+3}], s21 offen
    buffer_load_dwordx4 v[12:15], v4, s[{SX}:{SX+3}], s21 offen offset:128
    ''')
    stamp(k, opt, 0, SW, 60)
    k(f'''
    v_lshrrev_b32 v5, 2, v3
    v_and_b32 v6, 3, v3
    v_lshlrev_b32 v5, 10, v5
    v_lshl_add_u32 v5, v6, 8, v5
    v_lshl_add_u32 v5, v2, 4, v5
    s_lshr_b32 s23, s2, 1
    s_lshl_b32 s23, s23, 15
    s_and_b32 s24, s2, 1
    s_lshl_b32 s24, s24, 7
    s_add_u32 s23, s23, s24
    s_lshl_b32 s24, s20, 12
    s_add_u32 s23, s23, s24
    v_mov_b32 v40, -1
    v_mov_b32 v41, -1
    v_mov_b32 v42, -1
    v_mov_b32 v43, -1
    v_mov_b32 v44, 0
    v_lshlrev_b32 v45, 4, v63
    v_lshlrev_b32 v46, 2, v63
    s_lshl_b32 s25, s2, 10
    s_add_u32 s25, s25, {WS_ST}
    s_lshl_b32 s26, s2, 8
    s_add_u32 s26, s26, {WS_FLAG}
    v_lshlrev_b32 v47, 6, v2                 ; row*64
    s_lshl_b32 s27, s20, 3
    v_add_u32 v48, s27, v47                  ; + wave*8
    s_waitcnt vmcnt(0)
    s_cmp_lg_u32 s20, 7
    s_cbranch_scc1 {name}_noinit
    buffer_store_dwordx4 v[40:43], v45, s[{SW}:{SW+3}], s25 offen
    buffer_store_dword v44, v46, s[{SW}:{SW+3}], s26 offen
    {name}_noinit:
    ''')
    if opt.get('prefetch'):
        k(f'''
        v_lshlrev_b32 v49, 7, v63
        s_cmp_ge_u32 s20, 3
        s_cbranch_scc1 {name}_pf2
        s_mul_i32 s28, s2, 3
        s_add_u32 s28, s28, s20
        s_lshl_b32 s28, s28, 13
        buffer_load_dword v50, v49, s[{SQ}:{SQ+3}], s28 offen
        s_branch {name}_pf3
        {name}_pf2:
        s_cmp_ge_u32 s20, 7
        s_cbranch_scc1 {name}_pf3
        s_mul_i32 s28, s2, {224*128}
        s_sub_u32 s29, s20, 3
        s_mul_i32 s29, s29, {56*128}
        s_add_u32 s28, s28, s29
        v_min_u32 v49, {55*128}, v49
        buffer_load_dword v50, v49, s[{SI}:{SI+3}], s28 offen
        {name}_pf3:
        ''')
    for r in range(8):
        k(f'v_lshlrev_b32 v{16+2*r}, 16, v{8+r}\nv_and_b32 v{17+2*r}, 0xffff0000, v{8+r}')
    k('v_pk_add_f32 v[32:33], v[16:17], v[18:19]\nv_pk_mul_f32 v[34:35], v[16:17], v[16:17]\nv_pk_fma_f32 v[34:35], v[18:19], v[18:19], v[34:35]')
    for r in range(2, 8):
        k(f'v_pk_add_f32 v[32:33], v[32:33], v[{16+2*r}:{17+2*r}]\nv_pk_fma_f32 v[34:35], v[{16+2*r}:{17+2*r}], v[{16+2*r}:{17+2*r}], v[34:35]')
    k('''
    v_add_f32 v32, v32, v33
    v_add_f32 v33, v34, v35
    s_nop 1
    v_add_f32_dpp v32, v32, v32 row_ror:8 row_mask:0xf bank_mask:0xf
    v_add_f32_dpp v33, v33, v33 row_ror:8 row_mask:0xf bank_mask:0xf
    v_mov_b32 v34, v32
    v_mov_b32 v35, v33
    s_nop 1
    v_permlane16_swap_b32 v34, v32
    v_permlane16_swap_b32 v35, v33
    v_pk_add_f32 v[32:33], v[32:33], v[34:35]
    v_mov_b32 v34, v32
    v_mov_b32 v35, v33
    s_nop 1
    v_permlane32_swap_b32 v34, v32
    v_permlane32_swap_b32 v35, v33
    v_pk_add_f32 v[32:33], v[32:33], v[34:35]
    s_mov_b64 exec, 0xff
    ds_write_b64 v48, v[32:33]
    s_mov_b64 exec, -1
    s_waitcnt lgkmcnt(0)
    s_barrier
    ds_read_b128 v[32:35], v47
    ds_read_b128 v[36:39], v47 offset:16
    ds_read_b128 v[40:43], v47 offset:32
    ds_read_b128 v[52:55], v47 offset:48
    s_waitcnt lgkmcnt(2)
    v_pk_add_f32 v[32:33], v[32:33], v[34:35]
    v_pk_add_f32 v[36:37], v[36:37], v[38:39]
    s_waitcnt lgkmcnt(0)
    v_pk_add_f32 v[40:41], v[40:41], v[42:43]
    v_pk_add_f32 v[52:53], v[52:53], v[54:55]
    v_pk_add_f32 v[32:33], v[32:33], v[36:37]
    v_pk_add_f32 v[40:41], v[40:41], v[52:53]
    v_pk_add_f32 v[32:33], v[32:33], v[40:41]
    ''')
    ln_finish(k, 32, 33, 1024, 34)
    for r in range(8):
        k(f'v_pk_add_f32 v[{16+2*r}:{17+2*r}], v[{16+2*r}:{17+2*r}], v[32:33] op_sel_hi:[1,0] neg_lo:[0,1] neg_hi:[0,1]')
    for r in range(8):
        k(f'v_cvt_pk_bf16_f32 v{8+r}, v{16+2*r}, v{17+2*r}')
    for r in range(8):
        k(f'v_lshlrev_b32 v{16+2*r}, 16, v{8+r}\nv_and_b32 v{17+2*r}, 0xffff0000, v{8+r}')
    for r in range(8):
        k(f'v_pk_mul_f32 v[{16+2*r}:{17+2*r}], v[{16+2*r}:{17+2*r}], v[32:33] op_sel:[0,1] op_sel_hi:[1,1]')
    for r in range(8):
        k(f'v_cvt_pk_bf16_f32 v{8+r}, v{16+2*r}, v{17+2*r}')
    k(f'''
    buffer_store_dwordx4 v[8:11], v5, s[{SW}:{SW+3}], s23 offen
    buffer_store_dwordx4 v[12:15], v5, s[{SW}:{SW+3}], s23 offen offset:2048
    ''')
    stamp(k, opt, 1, SW, 60)
    k(f'{name}_end:\ns_endpgm')
    return k
```

```python
from common import *

def acc(j, rb): return (j * 4 + rb) * 4
V_XD = 208
V_WD = 216
V_PR = 222
V_WR = 226
V_PR2, V_WR2 = 234, 238
V_T = 246
A_W = 0
A_X = 52
L_WS = 13312
S_X, S_WQ, S_WW, S_WS = 4, 8, 12, 16
S_XO, S_QO, S_WO = 20, 21, 22
S_WB = 24
S_WAVE, S_RG, S_CG, S_P, S_IT = 29, 30, 31, 32, 33
S_DB = 40
NSUB = 32

class K1:
    def __init__(self, name, opt):
        self.name = name; self.opt = opt
        self.RD = RD = opt.get('RD', 4)
        self.L_DUM = RD * L_WS
        self.L_KV = self.L_DUM + 1024
        lds = self.L_KV + 49152
        self.k = Kernel(name, 256, 256, lds, vgpr=256 + 52 + RD * 16, sgpr=96, accum=256)
    def xf(self, u, rb): return A_X + (u % self.RD) * 16 + rb * 4
    def wf(self, j): return A_W + j * 4
    def mfma(self, typ, j, rb, u):
        d = acc(j, rb); x = self.xf(u, rb); w = self.wf(j)
        a, b = (x, w) if (typ == 'E' and j < 8) else (w, x)
        return ('i', f'v_mfma_f32_16x16x32_bf16 v[{d}:{d+3}], a[{a}:{a+3}], a[{b}:{b+3}], v[{d}:{d+3}]')
    def wread(self, typ, u, j):
        slot = u % self.RD
        hi = slot >= 4
        base = (slot & 3) * L_WS
        npan = 8 if typ == 'E' else 4
        U = 13 - npan
        ops = []
        for t in range(2):
            r = self.wf(j) + 2 * t
            if j < npan:
                off = base + (j >> 2) * 4096 + 512 * t; v = (V_PR2 if hi else V_PR) + (j & 3)
            else:
                c = 4 * U * t + (j - npan)
                off = base + npan * 1024 + 256 * (c >> 3); v = (V_WR2 if hi else V_WR) + (c & 7)
            ops.append(('lds', f'ds_read_b64_tr_b16 a[{r}:{r+1}], v{v} offset:{off}', ('W', u, j)))
        return ops
    def wdma(self, typ, u, slot):
        ring = (u % self.RD) * L_WS
        if typ == 'E':
            lo, sr, so = [(0, S_WQ, S_QO), (4096, S_WQ, S_QO), (8192, S_WW, S_WO), (None, S_WW, S_WO)][slot]
        else:
            lo, sr, so = [(0, S_WQ, S_QO), (4096, S_WW, S_WO), (8192, S_WW, S_WO), (None, S_WW, S_WO)][slot]
        m = f's_add_u32 m0, s{S_WB}, {ring + lo}' if lo is not None else f's_mov_b32 m0, s{S_DB + (u % self.RD)}'
        return [('i', m), ('vm', f'buffer_load_dwordx4 v{V_WD+slot}, s[{sr}:{sr+3}], s{so} offen lds', ('Wd', u))]
    def xload(self, u, rb):
        r = self.xf(u, rb)
        return ('vm', f'buffer_load_dwordx4 a[{r}:{r+3}], v{V_XD+rb}, s[{S_X}:{S_X+3}], s{S_XO} offen', ('Xd', u))
    def incs(self):
        return [('i', f's_add_u32 s{S_QO}, s{S_QO}, {32*6144}'), ('i', f's_add_u32 s{S_WO}, s{S_WO}, {32*7168}'), ('i', f's_add_u32 s{S_XO}, s{S_XO}, 1024')]
    def substep(self, typ, u):
        RD = self.RD
        gaps = [[] for _ in range(52)]; pre = [[] for _ in range(52)]
        for j in range(9):
            r = self.wread(typ, u, j + 4)
            gaps[4 * j].append(r[0]); gaps[4 * j + 1].append(r[1])
        if u + 1 < NSUB:
            nxt = sum([self.wread(typ, u + 1, j) for j in range(4)], [])
            for n, r in enumerate(nxt): gaps[40 + n].append(r)
            gaps[39] += [('wlv', [('W', u, 12)], [('Wd', u + 1), ('Xd', u + 1)]), ('i', 's_barrier')]
        for j in range(13): pre[4 * j].append(('wl', [('W', u, j)]))
        un = u + RD - 1
        if un < NSUB:
            for s in range(4):
                d = self.wdma(typ, un, s)
                gaps[8 * s + 2].append(d[0]); gaps[8 * s + 3].append(d[1])
                gaps[8 * s + 7].append(self.xload(un, s))
            inc = self.incs()
            gaps[34].append(inc[0]); gaps[35].append(inc[1]); gaps[38].append(inc[2])
        ops = []
        for m in range(52):
            ops += pre[m]
            j, rb = m >> 2, m & 3
            if (j + (u & 1)) & 1: rb = 3 - rb
            ops.append(self.mfma(typ, j, rb, u))
            ops += gaps[m]
        return ops
    def setup(self, typ):
        k = self.k; U = 5 if typ == 'E' else 9; t = V_T
        k(f'''
        v_lshrrev_b32 v{t}, 3, v255
        s_lshl_b32 s34, s{S_WAVE}, 3
        v_add_u32 v{t+1}, s34, v{t}                 ; k
        v_bfe_u32 v{t+2}, v{t+1}, 1, 1
        v_bfe_u32 v{t+3}, v{t+1}, 3, 1
        v_lshl_or_b32 v{t+2}, v{t+3}, 1, v{t+2}     ; f
        v_bfe_u32 v{t+3}, v255, 1, 2
        v_xor_b32 v{t+2}, v{t+2}, v{t+3}            ; j
        v_and_b32 v{t+3}, 1, v255
        v_lshlrev_b32 v{t+3}, 4, v{t+3}
        v_lshl_or_b32 v{t+2}, v{t+2}, 5, v{t+3}
        v_mul_u32_u24 v{t+1}, 6144, v{t+1}
        v_add_u32 v{t+1}, v{t+1}, v{t+2}
        s_lshl_b32 s34, s{S_P}, 7
        ''')
        if typ == 'E':
            k(f'''s_add_u32 s35, s34, 2048
            v_add_u32 v{V_WD}, s35, v{t+1}
            s_add_u32 s35, s34, 4096
            v_add_u32 v{V_WD+1}, s35, v{t+1}''')
            wslots = [(2, 0, False), (3, 4, True)]; wcol = 0
        else:
            k(f'v_add_u32 v{V_WD}, s34, v{t+1}')
            wslots = [(1, 0, False), (2, 4, False), (3, 8, True)]; wcol = 160
        k(f's_mul_i32 s35, s{S_P}, 448')
        if wcol: k(f's_add_u32 s35, s35, {wcol}')
        magic = {5: 52429, 9: 58255}[U]; sh = {5: 18, 9: 19}[U]; mg8 = {5: 13108, 9: 7282}[U]
        for slot, n0, only0 in wslots:
            if only0: k(f's_mov_b32 s34, {32*n0}')
            else: k(f's_lshl_b32 s34, s{S_WAVE}, 5\n s_add_u32 s34, s34, {32*n0}')
            k(f'''
            v_lshrrev_b32 v{t}, 1, v255
            v_add_u32 v{t}, s34, v{t}                  ; pos
            v_mul_u32_u24 v{t+1}, {mg8}, v{t}
            v_bfe_u32 v{t+1}, v{t+1}, 19, 1
            v_lshlrev_b32 v{t+1}, 2, v{t+1}
            v_xor_b32 v{t}, v{t}, v{t+1}               ; u
            v_mul_u32_u24 v{t+1}, {magic}, v{t}
            v_lshrrev_b32 v{t+1}, {sh}, v{t+1}         ; k
            v_mul_u32_u24 v{t+2}, {U}, v{t+1}
            v_sub_u32 v{t+2}, v{t}, v{t+2}             ; j
            v_mul_u32_u24 v{t+1}, 7168, v{t+1}
            v_lshl_add_u32 v{t+1}, v{t+2}, 5, v{t+1}
            v_and_b32 v{t+2}, 1, v255
            v_lshl_add_u32 v{t+1}, v{t+2}, 4, v{t+1}
            v_add_u32 v{V_WD+slot}, s35, v{t+1}
            ''')
            if only0:
                k(f'''s_cmp_eq_u32 s{S_WAVE}, 0
                s_cselect_b32 s34, -1, 0
                v_and_b32 v{V_WD+slot}, s34, v{V_WD+slot}
                s_mov_b32 s36, {self.L_DUM}''')
                for r in range(self.RD):
                    k(f's_cselect_b32 s{S_DB+r}, {r*L_WS + 12288}, s36')
    def setup2(self, typ):
        U = 5 if typ == 'E' else 9; t = V_T
        o = f'''
        v_lshrrev_b32 v{t}, 4, v255
        v_bfe_u32 v{t+1}, v255, 2, 2
        v_lshl_add_u32 v{t+1}, v{t}, 3, v{t+1}      ; k0
        v_mul_u32_u24 v{t+2}, {U}, v{t+1}           ; a
        v_and_b32 v{t+3}, 1, v{t}
        v_lshlrev_b32 v{t+3}, 2, v{t+3}             ; x
        v_and_b32 v{t+4}, 3, v255
        v_lshlrev_b32 v{t+4}, 3, v{t+4}
        '''
        for e in range(8):
            o += f'''v_add_u32 v{t+5}, {e}, v{t+2}
            v_xor_b32 v{t+5}, v{t+5}, v{t+3}
            v_lshl_add_u32 v{V_WR+e}, v{t+5}, 5, v{t+4}
            '''
        o += f'''
        v_bfe_u32 v{t+5}, v255, 3, 1
        v_lshrrev_b32 v{t+3}, 1, v{t+3}
        v_or_b32 v{t+5}, v{t+5}, v{t+3}             ; f
        v_lshl_add_u32 v{t+4}, v{t+1}, 7, v{t+4}
        '''
        for j in range(4):
            o += f'''v_xor_b32 v{t+6}, {j}, v{t+5}
            v_lshl_add_u32 v{V_PR+j}, v{t+6}, 5, v{t+4}
            '''
        if self.RD > 4:
            for j in range(12): o += f'v_add_u32 v{V_PR2+j}, {4*L_WS}, v{V_PR+j}\n'
        return o
    def mainloop(self, typ):
        k = self.k; RD = self.RD; q = Q(); ops = []
        for u in range(RD - 1):
            for s in range(4):
                d = self.wdma(typ, u, s)
                ops += [d[0], self.xload(u, s), d[1]]
            ops += self.incs()
        ops.append(('i', self.setup2(typ)))
        for r in range(208): ops.append(('i', f'v_mov_b32 v{r}, 0'))
        ops += [('wv', [('Wd', 0), ('Xd', 0)]), ('i', 's_barrier')]
        for j in range(4): ops += self.wread(typ, 0, j)
        t, _ = resolve(ops, q)
        k('\n'.join(t))
        if self.opt.get('stamp'):
            stamp(k, self.opt, 1, S_WS, V_T); q.v.append('st'); q.l = []
        nit = NSUB // RD
        k(f's_mov_b32 s{S_IT}, {nit - 1}')
        lab = k.label('loop')
        body = lambda it: sum([self.substep(typ, RD * it + x) for x in range(RD)], [])
        t = loop_resolve(body, range(nit - 1), q)
        k(f'.p2align 4\n{lab}:')
        k('\n'.join(t))
        k(f's_sub_u32 s{S_IT}, s{S_IT}, 1\ns_cmp_lg_u32 s{S_IT}, 0\ns_cbranch_scc1 {lab}')
        t, _ = resolve(body(nit - 1), q)
        k('\n'.join(t))
        stamp(k, self.opt, 2, S_WS, V_T)
    def prologue(self):
        k = self.k; name = self.name
        k(f'''
        s_cmp_ge_u32 s2, 256
        s_cbranch_scc1 {name}_end
        s_load_dwordx2 s[{S_X}:{S_X+1}], s[0:1], 80
        s_load_dwordx2 s[{S_WQ}:{S_WQ+1}], s[0:1], 8
        s_load_dwordx2 s[{S_WW}:{S_WW+1}], s[0:1], 32
        s_load_dwordx2 s[{S_WS}:{S_WS+1}], s[0:1], 80
        v_lshrrev_b32 v1, 6, v0
        v_and_b32 v255, 63, v0
        ''')
        srd(k, S_X, 0, 4 << 20)
        k(f'v_readfirstlane_b32 s{S_WAVE}, v1')
        srd(k, S_WQ, 0, 1024 * 6144); srd(k, S_WW, 0, 1024 * 7168); srd(k, S_WS, 0, 0x10000000)
        k(f'''
        s_and_b32 s34, s2, 1
        s_lshl_b32 s34, s34, 2
        s_bfe_u32 s35, s2, 0x20003
        s_add_u32 s{S_RG}, s34, s35
        s_bfe_u32 s34, s2, 0x20001
        s_lshl_b32 s34, s34, 3
        s_lshr_b32 s35, s2, 5
        s_add_u32 s{S_CG}, s34, s35
        s_lshr_b32 s{S_P}, s{S_CG}, 1
        s_lshl_b32 s{S_WB}, s{S_WAVE}, 10
        s_mov_b32 s{S_XO}, 0
        s_mov_b32 s{S_QO}, 0
        s_mov_b32 s{S_WO}, 0
        s_lshl_b32 s34, s{S_RG}, 19
        s_lshl_b32 s35, s{S_WAVE}, 17
        s_add_u32 s34, s34, s35
        v_lshl_add_u32 v{V_XD}, v255, 4, s34
        ''')
        for i in range(1, 4): k(f'v_add_u32 v{V_XD+i}, {i*32768}, v{V_XD}')
    def build(self):
        from k1epi import epilogue
        k = self.k; name = self.name
        self.prologue()
        k(f's_bitcmp1_b32 s{S_CG}, 0\ns_cbranch_scc1 {name}_O')
        for typ in 'EO':
            if typ == 'O': k(f'{name}_O:')
            self.setup(typ)
            k('s_waitcnt lgkmcnt(0)')
            stamp(k, self.opt, 0, S_WS, V_T)
            if self.opt.get('stamp'): k('s_waitcnt vmcnt(0)')
            self.mainloop(typ)
            epilogue(self, typ)
            stamp(k, self.opt, 3, S_WS, V_T)
            k('s_endpgm')
        k(f'{name}_end:\ns_endpgm')
        return k
```

```python
from common import *
from k1 import acc, S_WS, S_WAVE, S_RG, S_CG, S_P
import math
VC = 208
VT = 212
VS = 228
VA = 244
SB = 60
LOG2E = 1.4426950408889634
C1 = -2.0 * math.sqrt(2.0 / math.pi) * LOG2E
C2 = C1 * 0.044715

def pairs(regs4):
    return [r + o for r in regs4 for o in (0, 2)]

def gelu(k, regs4, tset, stats_rb=None, first=False):
    P = pairs(regs4); T = [VT + tset * 8 + 2 * i for i in range(len(P))]
    for p, t in zip(P, T): k(f'v_pk_mul_f32 v[{t}:{t+1}], v[{p}:{p+1}], v[{p}:{p+1}]')
    for p, t in zip(P, T): k(f'v_pk_fma_f32 v[{t}:{t+1}], v[{t}:{t+1}], v[{VC}:{VC+1}], v[{VC}:{VC+1}] op_sel:[0,0,1] op_sel_hi:[1,0,1]')
    for p, t in zip(P, T): k(f'v_pk_mul_f32 v[{t}:{t+1}], v[{t}:{t+1}], v[{p}:{p+1}]')
    for t in T: k(f'v_exp_f32 v{t}, v{t}\nv_exp_f32 v{t+1}, v{t+1}')
    for t in T: k(f'v_pk_add_f32 v[{t}:{t+1}], v[{t}:{t+1}], 1.0 op_sel_hi:[1,0]')
    for t in T: k(f'v_rcp_f32 v{t}, v{t}\nv_rcp_f32 v{t+1}, v{t+1}')
    for p, t in zip(P, T): k(f'v_pk_mul_f32 v[{p}:{p+1}], v[{p}:{p+1}], v[{t}:{t+1}]')
    if stats_rb is not None:
        s = VS + 2 * stats_rb; q = VS + 8 + 2 * stats_rb
        for n, p in enumerate(P):
            if first and n == 0:
                k(f'v_pk_mul_f32 v[{q}:{q+1}], v[{p}:{p+1}], v[{p}:{p+1}]')
            elif first and n == 1:
                k(f'v_pk_add_f32 v[{s}:{s+1}], v[{P[0]}:{P[0]+1}], v[{p}:{p+1}]')
                k(f'v_pk_fma_f32 v[{q}:{q+1}], v[{p}:{p+1}], v[{p}:{p+1}], v[{q}:{q+1}]')
            else:
                k(f'v_pk_add_f32 v[{s}:{s+1}], v[{s}:{s+1}], v[{p}:{p+1}]')
                k(f'v_pk_fma_f32 v[{q}:{q+1}], v[{p}:{p+1}], v[{p}:{p+1}], v[{q}:{q+1}]')

def phi(k, regs4, tset):
    P = pairs(regs4); T = [VT + tset * 8 + 2 * i for i in range(len(P))]
    c = VC + 2
    for p, t in zip(P, T): k(f'v_pk_mul_f32 v[{t}:{t+1}], v[{p}:{p+1}], v[{c}:{c+1}] op_sel_hi:[1,0]')
    for p in P: k(f'v_pk_add_f32 v[{p}:{p+1}], v[{p}:{p+1}], 1.0 op_sel_hi:[1,0]')
    for t in T: k(f'v_exp_f32 v{t}, v{t} clamp\nv_exp_f32 v{t+1}, v{t+1} clamp')
    for p, t in zip(P, T): k(f'v_max_f32 v{p}, v{p}, v{t}\nv_max_f32 v{p+1}, v{p+1}, v{t+1}')
    for p in P: k(f'v_pk_add_f32 v[{p}:{p+1}], v[{p}:{p+1}], v[{c}:{c+1}] op_sel:[0,1] op_sel_hi:[1,1]')

def pack(k, a, b=None):
    k(f'v_cvt_pk_bf16_f32 v{a}, v{a}, v{a+1}\nv_cvt_pk_bf16_f32 v{a+1}, v{a+2}, v{a+3}')
    if b is not None:
        k(f'v_cvt_pk_bf16_f32 v{a+2}, v{b}, v{b+1}\nv_cvt_pk_bf16_f32 v{a+3}, v{b+2}, v{b+3}')

def win_groups(typ):
    if typ == 'E': return [(8, 9, 0, None), (10, 11, 1024, None), (12, None, 2048, 0)]
    return [(5, 6, 0, None), (7, 8, 1024, None), (9, 10, 2048, None), (11, 12, 3072, None), (4, None, 0, 1)]

def bases(k, s0, ws, ncp, cp_sgpr):
    k(f'''s_lshl_b32 s34, s{S_RG}, 4
    s_lshl_b32 s35, s{S_WAVE}, 2
    s_add_u32 s34, s34, s35
    s_mul_i32 s34, s34, {ncp}
    s_add_u32 s34, s34, s{cp_sgpr}
    s_lshl_b32 s34, s34, 10
    s_add_u32 s{s0}, s34, {ws}''')
    for rb in range(1, 4): k(f's_add_u32 s{s0+rb}, s{s0}, {rb*ncp*1024}')

def qpart(k):
    k(f's_lshl_b32 s36, s{S_P}, 1')
    bases(k, SB + 4, WS_PQ, 32, 36)
    n = 0
    for hh in range(2):
        for rb in range(4):
            a, b = acc(2 * hh, rb), acc(2 * hh + 1, rb)
            phi(k, [a, b], n & 1); n += 1
            pack(k, a, b)
            k(f'buffer_store_dwordx4 v[{a}:{a+3}], v{VA}, s[{S_WS}:{S_WS+3}], s{SB+4+rb} offen offset:{hh*1024}')

def kvpart(K, k):
    n = 0
    for j in range(4):
        for ks in range(2):
            a, b = acc(j, 2 * ks), acc(j, 2 * ks + 1)
            phi(k, [a, b], n & 1); n += 1
            pack(k, a, b)
    for j in range(4, 8):
        for ks in range(2): pack(k, acc(j, 2 * ks), acc(j, 2 * ks + 1))
    free = [acc(j, rb) for j in range(8) for rb in (1, 3)]
    ones = free[12]
    for r in range(4): k(f'v_mov_b32 v{ones+r}, 0x3f803f80')
    k('s_nop 1')
    blocks = []
    for hh in range(2):
        for db in range(2):
            for eb in range(3): blocks.append((hh, db, eb))
    for ks in range(2):
        for n, (hh, db, eb) in enumerate(blocks):
            d = free[n]; a = acc(2 * hh + db, 2 * ks)
            b = acc(4 + 2 * hh + eb, 2 * ks) if eb < 2 else ones
            c = f'v[{d}:{d+3}]' if ks else '0'
            k(f'v_mfma_f32_16x16x32_bf16 v[{d}:{d+3}], v[{a}:{a+3}], v[{b}:{b+3}], {c}')
    k(f'''s_mul_i32 s34, s{S_WAVE}, 12288
    s_add_u32 s34, s34, {K.L_KV}
    v_add_u32 v{VA+4}, s34, v{VA}
    s_mul_i32 s34, s{S_WAVE}, 3072
    s_add_u32 s34, s34, {K.L_KV}
    v_add_u32 v{VA+5}, s34, v{VA}
    s_nop 1''')
    for n in range(12):
        k(f'ds_write_b128 v{VA+4}, v[{free[n]}:{free[n]+3}] offset:{n*1024}')
    k('s_waitcnt lgkmcnt(0)\ns_barrier')
    tmp = [acc(j, 0) for j in range(8)] + [acc(j, 2) for j in range(4)]
    for n in range(3):
        for w in range(4):
            t = tmp[n * 4 + w]
            k(f'ds_read_b128 v[{t}:{t+3}], v{VA+5} offset:{w*12288 + n*1024}')
    k(f'''s_lshl_b32 s34, s{S_RG}, 5
    s_lshl_b32 s35, s{S_P}, 1
    s_add_u32 s34, s34, s35
    s_mul_i32 s34, s34, 6
    s_mul_i32 s35, s{S_WAVE}, 3
    s_add_u32 s34, s34, s35
    s_lshl_b32 s34, s34, 10
    s_add_u32 s34, s34, {WS_KVP}''')
    for n in range(3):
        t = tmp[n * 4:n * 4 + 4]
        k(f's_waitcnt lgkmcnt({8 - 4*n})')
        for o in (0, 2):
            k(f'v_pk_add_f32 v[{t[0]+o}:{t[0]+o+1}], v[{t[0]+o}:{t[0]+o+1}], v[{t[1]+o}:{t[1]+o+1}]')
            k(f'v_pk_add_f32 v[{t[2]+o}:{t[2]+o+1}], v[{t[2]+o}:{t[2]+o+1}], v[{t[3]+o}:{t[3]+o+1}]')
        for o in (0, 2):
            k(f'v_pk_add_f32 v[{t[0]+o}:{t[0]+o+1}], v[{t[0]+o}:{t[0]+o+1}], v[{t[2]+o}:{t[2]+o+1}]')
        k(f'buffer_store_dwordx4 v[{t[0]}:{t[0]+3}], v{VA}, s[{S_WS}:{S_WS+3}], s34 offen offset:{n*1024}')

def epilogue(K, typ):
    k = K.k; name = K.name
    G = win_groups(typ)
    k(f'''
    v_mov_b32 v{VC}, {f2u(C2):#x}
    v_mov_b32 v{VC+1}, {f2u(C1):#x}
    v_mov_b32 v{VC+2}, {f2u(LOG2E):#x}
    v_mov_b32 v{VC+3}, {f2u(1e-6):#x}
    v_lshlrev_b32 v{VA}, 4, v255
    s_and_b32 s36, s{S_P}, 7
    s_mul_i32 s36, s36, 7
    ''')
    if typ == 'O': k('s_add_u32 s36, s36, 2')
    k(f's_cmp_ge_u32 s{S_P}, 8\ns_cbranch_scc1 {name}_{typ}_z2')
    bases(k, SB, WS_Z1, 56, 36)
    k(f'v_add_u32 v{VA+1}, {1024 if typ == "O" else 0}, v{VA}')
    n = 0
    for (ja, jb, off, hb) in G:
        if jb is not None:
            for rb in range(4):
                a, b = acc(ja, rb), acc(jb, rb)
                gelu(k, [a, b], n & 1); n += 1
                pack(k, a, b)
                k(f'buffer_store_dwordx4 v[{a}:{a+3}], v{VA+1}, s[{S_WS}:{S_WS+3}], s{SB+rb} offen offset:{off}')
        else:
            for rb in (0, 2):
                a, b = acc(ja, rb), acc(ja, rb + 1)
                gelu(k, [a, b], n & 1); n += 1
                pack(k, a); pack(k, b)
                k(f'buffer_store_dwordx2 v[{a}:{a+1}], v{VA}, s[{S_WS}:{S_WS+3}], s{SB+rb} offen offset:{off + 8*hb}')
                k(f'buffer_store_dwordx2 v[{b}:{b+1}], v{VA}, s[{S_WS}:{S_WS+3}], s{SB+rb+1} offen offset:{off + 8*hb}')
    if typ == 'O': qpart(k)
    else: kvpart(K, k)
    k(f's_branch {name}_{typ}_done')
    k(f'{name}_{typ}_z2:')
    bases(k, SB, WS_Z2, 56, 36)
    n = 0
    for gi, (ja, jb, off, hb) in enumerate(G):
        for rb in range(4):
            regs = [acc(ja, rb)] + ([acc(jb, rb)] if jb is not None else [])
            gelu(k, regs, n & 1, stats_rb=rb, first=(gi == 0)); n += 1
    S = [VS + 2 * rb for rb in range(4)]; Qs = [VS + 8 + 2 * rb for rb in range(4)]
    for r in S + Qs: k(f'v_add_f32 v{r}, v{r}, v{r+1}')
    k(f'''s_lshl_b32 s34, s{S_RG}, 8
    s_lshl_b32 s35, s{S_WAVE}, 6
    s_add_u32 s34, s34, s35
    s_lshl_b32 s34, s34, 3
    s_add_u32 s37, s34, {WS_ST}
    s_and_b32 s35, s{S_CG}, 15
    s_lshl_b32 s35, s35, 14
    s_add_u32 s38, s37, s35''')
    for X in (S, Qs):
        k(f'v_permlane32_swap_b32 v{X[0]}, v{X[2]}\nv_permlane32_swap_b32 v{X[1]}, v{X[3]}')
    for X in (S, Qs):
        k(f'v_add_f32 v{X[0]}, v{X[0]}, v{X[2]}\nv_add_f32 v{X[1]}, v{X[1]}, v{X[3]}')
    k(f'v_lshlrev_b32 v{VA+3}, 3, v255\ns_nop 0')
    for X in (S, Qs): k(f'v_permlane16_swap_b32 v{X[0]}, v{X[1]}')
    k(f'v_add_f32 v{VS}, v{S[0]}, v{S[1]}\nv_add_f32 v{VS+1}, v{Qs[0]}, v{Qs[1]}')
    k(f'buffer_store_dwordx2 v[{VS}:{VS+1}], v{VA+3}, s[{S_WS}:{S_WS+3}], s38 offen sc1')
    if typ == 'O': qpart(k)
    else: kvpart(K, k)
    t = VT
    k(f'''
    v_bfe_u32 v{t}, v255, 2, 1
    v_lshlrev_b32 v{t}, 9, v{t}
    v_bfe_u32 v{t+1}, v255, 3, 1
    v_lshl_add_u32 v{t}, v{t+1}, 7, v{t}
    v_and_b32 v{t+1}, 3, v255
    v_lshl_add_u32 v{t}, v{t+1}, 5, v{t}
    v_bfe_u32 v{t+1}, v255, 5, 1
    v_lshl_add_u32 v{t}, v{t+1}, 4, v{t}          ; + h*16
    v_bfe_u32 v{t+1}, v255, 4, 1
    v_lshl_add_u32 v{VA+1}, v{t+1}, 8, v{t}
    v_lshl_add_u32 v{VA+2}, v{t+1}, 3, v{t}
    ''')
    if typ == 'O': k(f'v_add_u32 v{VA+1}, 1024, v{VA+1}')
    R = 0
    k(f's_mov_b32 s39, 0x40000\ns_nop 0\n{name}_{typ}_poll:')
    k('s_mov_b32 s35, s37')
    for c in range(16):
        k(f'buffer_load_dwordx2 v[{R+2*c}:{R+2*c+1}], v{VA+3}, s[{S_WS}:{S_WS+3}], s35 offen sc1')
        if c < 15: k('s_add_u32 s35, s35, 16384')
    k('s_waitcnt vmcnt(0)')
    k(f'v_max3_u32 v{t}, v{R}, v{R+1}, v{R+2}')
    for c in range(3, 31, 2): k(f'v_max3_u32 v{t}, v{t}, v{R+c}, v{R+c+1}')
    k(f'''v_max_u32 v{t}, v{t}, v{R+31}
    v_cmp_eq_u32 vcc, -1, v{t}
    s_sub_u32 s39, s39, 1
    s_cbranch_scc1 {name}_{typ}_go
    s_cbranch_vccnz {name}_{typ}_poll
    {name}_{typ}_go:''')
    for st in (8, 4, 2, 1):
        for c in range(st): k(f'v_pk_add_f32 v[{R+2*c}:{R+2*c+1}], v[{R+2*c}:{R+2*c+1}], v[{R+2*(c+st)}:{R+2*(c+st)+1}]')
    ln_finish(k, R, R + 1, 1792, t)
    k(f'''v_mul_f32 v{R}, v{R}, v{R+1}
    v_mov_b32 v{VS}, v{R+1}
    v_mov_b32 v{VS+4}, v{R+1}
    v_sub_f32 v{VS+1}, 0, v{R}
    v_sub_f32 v{VS+5}, 0, v{R}
    s_nop 1
    v_permlane32_swap_b32 v{VS}, v{VS+4}
    v_permlane32_swap_b32 v{VS+1}, v{VS+5}
    v_mov_b32 v{VS+2}, v{VS}
    v_mov_b32 v{VS+3}, v{VS+1}
    v_mov_b32 v{VS+6}, v{VS+4}
    v_mov_b32 v{VS+7}, v{VS+5}
    s_nop 0
    v_permlane16_swap_b32 v{VS}, v{VS+2}
    v_permlane16_swap_b32 v{VS+1}, v{VS+3}
    v_permlane16_swap_b32 v{VS+4}, v{VS+6}
    v_permlane16_swap_b32 v{VS+5}, v{VS+7}
    ''')
    for (ja, jb, off, hb) in G:
        for rb in range(4):
            regs = [acc(ja, rb)] + ([acc(jb, rb)] if jb is not None else [])
            c = VS + 2 * rb
            for p in pairs(regs):
                k(f'v_pk_fma_f32 v[{p}:{p+1}], v[{p}:{p+1}], v[{c}:{c+1}], v[{c}:{c+1}] op_sel:[0,0,1] op_sel_hi:[1,0,1]')
        for rb in range(4):
            pack(k, acc(ja, rb), acc(jb, rb) if jb is not None else None)
        for rb in range(4):
            a = acc(ja, rb)
            if jb is not None:
                if rb == 0: k('s_nop 0')
                k(f'v_permlane16_swap_b32 v{a}, v{a+2}\nv_permlane16_swap_b32 v{a+1}, v{a+3}')
                k(f'buffer_store_dwordx4 v[{a}:{a+3}], v{VA+1}, s[{S_WS}:{S_WS+3}], s{SB+rb} offen offset:{off}')
            else:
                k(f'buffer_store_dwordx2 v[{a}:{a+1}], v{VA+2}, s[{S_WS}:{S_WS+3}], s{SB+rb} offen offset:{off + 256*hb}')
    k(f'{name}_{typ}_done:')
```

```python
from core128 import *
S_WS, S_SP, S_B = 4, 8, 12
S_WAVE, S_AO, S_BO, S_TB, S_FB, S_IT = 21, 22, 23, 24, 25, 26
V_AD, V_BD, V_AR, V_BR = V0, V0 + 1, V0 + 5, V0 + 7
V_Z = 144
V_BIAS = 176
V_L16 = 180; V_T = 182; V_LANE = 191

class G3(Core):
    def a_dma(self, st, i): return f'buffer_load_dwordx4 v{V_AD}, s[{S_WS}:{S_WS+3}], s{S_AO} offen offset:{i*1024} lds'
    def b_dma(self, st, i): return f'buffer_load_dwordx4 v{V_BD+i}, s[{S_SP}:{S_SP+3}], s{S_BO} offen offset:{i*1024} lds'
    def inc_a(self): return [('i', f's_add_u32 s{S_AO}, s{S_AO}, {4*57344}')]
    def inc_b(self): return [('i', f's_add_u32 s{S_BO}, s{S_BO}, 128')]
    def a_read(self, st, kk, j):
        r = FA(kk, j); h = (st >> 1) & 1
        return [f'ds_read_b64_tr_b16 v[{r+2*t}:{r+2*t+1}], v{V_AR+h} offset:{(st & 1)*STG + A_OFF + kk*8192 + (j >> 1)*1024 + (2*t + (j & 1))*256}' for t in range(2)]
    def b_read(self, st, kk, j):
        r = FB(kk, j); h = (st >> 1) & 1
        return f'ds_read_b128 v[{r}:{r+3}], v{V_BR + 2*h + kk} offset:{(st & 1)*STG + B_OFF + j*2048}'

def side(k, name, opt):
    L = V_L16
    k(f'''
    s_mul_i32 s30, s24, 6144
    s_add_u32 s30, s30, {WS_KVP}
    ''')
    for half in range(2):
        for r in range(4):
            for b in range(6):
                d = 24 + (r * 6 + b) * 4
                k(f'buffer_load_dwordx4 v[{d}:{d+3}], v{L}, s[{S_WS}:{S_WS+3}], s30 offen offset:{(b & 3)*1024}' if b < 4 else
                  f'buffer_load_dwordx4 v[{d}:{d+3}], v{L+1}, s[{S_WS}:{S_WS+3}], s30 offen offset:{(b & 3)*1024}')
            k(f's_add_u32 s30, s30, {32*6144}')
        for r in range(4):
            k(f's_waitcnt vmcnt({18 - 6*r})')
            for p in range(0, 24, 2):
                d = 24 + r * 24 + p
                if half == 0 and r == 0: k(f'v_mov_b32 v{p}, v{d}\nv_mov_b32 v{p+1}, v{d+1}')
                else: k(f'v_pk_add_f32 v[{p}:{p+1}], v[{p}:{p+1}], v[{d}:{d+1}]')
    for eb in range(3):
        a, b = eb * 4, 12 + eb * 4
        k(f'''v_cvt_pk_bf16_f32 v{a}, v{a}, v{a+1}
        v_cvt_pk_bf16_f32 v{a+1}, v{a+2}, v{a+3}
        v_cvt_pk_bf16_f32 v{a+2}, v{b}, v{b+1}
        v_cvt_pk_bf16_f32 v{a+3}, v{b+2}, v{b+3}''')
    k(f'''
    s_lshl_b32 s30, s{S_WAVE}, 20
    s_lshl_b32 s31, s24, 10
    s_add_u32 s30, s30, s31
    s_add_u32 s31, s30, {WS_O}
    s_add_u32 s30, s30, {WS_PQ}
    ''')
    NB = 8
    def P(bt, n): return 16 + (bt & 1) * 32 + n * 4
    def loads(bt):
        for n in range(NB):
            k(f'buffer_load_dwordx4 v[{P(bt,n)}:{P(bt,n)+3}], v{L}, s[{S_WS}:{S_WS+3}], s30 offen\ns_add_u32 s30, s30, 32768')
    loads(0)
    for bt in range(4):
        if bt < 3: loads(bt + 1)
        nst = 0 if bt == 0 else NB
        k(f's_waitcnt vmcnt({nst + (NB if bt < 3 else 0)})')
        for n in range(NB):
            d = 80 + n * 12; p = P(bt, n)
            for eb in range(3):
                k(f'v_mfma_f32_16x16x32_bf16 v[{d+4*eb}:{d+4*eb+3}], v[{4*eb}:{4*eb+3}], v[{p}:{p+3}], 0')
        k('s_nop 7')
        for n in range(NB): k(f'v_add_f32 v{80+n*12+8}, {f2u(1e-6):#x}, v{80+n*12+8}')
        for n in range(NB): k(f'v_rcp_f32 v{80+n*12+8}, v{80+n*12+8}')
        for n in range(NB):
            d = 80 + n * 12
            for o in range(0, 8, 2):
                k(f'v_pk_mul_f32 v[{d+o}:{d+o+1}], v[{d+o}:{d+o+1}], v[{d+8}:{d+9}] op_sel_hi:[1,0]')
            for o in range(4): k(f'v_cvt_pk_bf16_f32 v{d+o}, v{d+2*o}, v{d+2*o+1}')
            k(f'buffer_store_dwordx4 v[{d}:{d+3}], v{L}, s[{S_WS}:{S_WS+3}], s31 offen\ns_add_u32 s31, s31, 32768')
        k('s_nop 1')

def make_k2(name, opt):
    k = Kernel(name, 256, 256, 4 * STG, vgpr=192, sgpr=96)
    g = G3(); t = V_T
    k(f'''
    s_cmp_ge_u32 s2, 256
    s_cbranch_scc1 {name}_end
    s_load_dwordx2 s[{S_WS}:{S_WS+1}], s[0:1], 80
    s_load_dwordx2 s[{S_SP}:{S_SP+1}], s[0:1], 40
    s_load_dwordx2 s[{S_B}:{S_B+1}], s[0:1], 48
    v_lshrrev_b32 v1, 6, v0
    v_and_b32 v{V_LANE}, 63, v0
    ''')
    srd(k, S_WS, 0, 0x10000000)
    k(f'v_readfirstlane_b32 s{S_WAVE}, v1')
    srd(k, S_SP, 0, 8 << 20); srd(k, S_B, 0, 4096)
    k(f'''
    v_lshlrev_b32 v{V_L16}, 4, v{V_LANE}
    v_add_u32 v{V_L16+1}, 4096, v{V_L16}
    s_lshr_b32 s30, s2, 3                   ; idx
    s_and_b32 s31, s2, 7                    ; xcd
    s_cmp_lt_u32 s30, 28
    s_cbranch_scc1 {name}_main
    s_lshl_b32 s31, s31, 2
    s_add_u32 s24, s31, s30
    s_sub_u32 s24, s24, 28
    s_waitcnt lgkmcnt(0)
    ''')
    stamp(k, opt, 0, S_WS, t)
    if opt.get('stamp'): k('s_waitcnt vmcnt(0)')
    side(k, name, opt)
    stamp(k, opt, 3, S_WS, t)
    k(f'''s_endpgm
    {name}_main:
    s_and_b32 s32, s31, 3
    s_lshl_b32 s32, s32, 2
    s_and_b32 s33, s30, 3
    s_add_u32 s{S_TB}, s32, s33
    s_lshr_b32 s32, s31, 2
    s_mul_i32 s32, s32, 7
    s_lshr_b32 s33, s30, 2
    s_add_u32 s{S_FB}, s32, s33
    s_lshl_b32 s{g.S_LB}, s{S_WAVE}, 12
    s_mul_i32 s32, s{S_WAVE}, 57344
    s_lshl_b32 s33, s{S_FB}, 12
    s_add_u32 s32, s32, s33
    v_add_u32 v{V_AD}, s32, v{V_L16}
    s_mov_b32 s{S_AO}, {WS_Z2}
    s_mov_b32 s{S_BO}, 0
    ; B dma: (t0 + 32w + 8i + (l>>3))*4096 + ((l&7)^(l>>3))*16 - i*1024
    v_lshrrev_b32 v{t}, 3, v{V_LANE}
    v_and_b32 v{t+1}, 7, v{V_LANE}
    v_xor_b32 v{t+1}, v{t}, v{t+1}
    v_lshlrev_b32 v{t+1}, 4, v{t+1}
    v_lshl_add_u32 v{t+1}, v{t}, 12, v{t+1}
    s_lshl_b32 s32, s{S_TB}, 19
    s_lshl_b32 s33, s{S_WAVE}, 17
    s_add_u32 s32, s32, s33
    v_add_u32 v{V_BD}, s32, v{t+1}
    v_add_u32 v{V_BD+1}, {1*31744}, v{V_BD}
    v_add_u32 v{V_BD+2}, {2*31744}, v{V_BD}
    v_add_u32 v{V_BD+3}, {3*31744}, v{V_BD}
    s_waitcnt lgkmcnt(0)
    ''')
    stamp(k, opt, 0, S_WS, t)
    if opt.get('stamp'): k('s_waitcnt vmcnt(0)')
    mid = [('i', f'''
    v_lshrrev_b32 v{t}, 5, v{V_LANE}
    v_lshlrev_b32 v{t}, 12, v{t}
    v_bfe_u32 v{t+1}, v{V_LANE}, 2, 3
    v_lshl_add_u32 v{t}, v{t+1}, 5, v{t}
    v_and_b32 v{t+1}, 3, v{V_LANE}
    v_lshl_add_u32 v{t}, v{t+1}, 3, v{t}
    s_lshr_b32 s32, s{S_WAVE}, 1
    s_lshl_b32 s32, s32, 11
    v_add_u32 v{V_AR}, s32, v{t}
    v_add_u32 v{V_AR+1}, 0x10000, v{V_AR}
    v_and_b32 v{t}, 15, v{V_LANE}
    v_lshrrev_b32 v{t+1}, 4, v{V_LANE}
    v_and_b32 v{t+2}, 7, v{V_LANE}
    v_xor_b32 v{t+1}, v{t+1}, v{t+2}
    v_lshlrev_b32 v{t+1}, 4, v{t+1}
    v_lshl_add_u32 v{t+1}, v{t}, 7, v{t+1}
    s_and_b32 s33, s{S_WAVE}, 1
    s_lshl_b32 s32, s33, 13
    v_add_u32 v{V_BR}, s32, v{t+1}
    v_xor_b32 v{V_BR+1}, 64, v{V_BR}
    v_add_u32 v{V_BR+2}, 0x10000, v{V_BR}
    v_add_u32 v{V_BR+3}, 0x10000, v{V_BR+1}
    v_lshlrev_b32 v{t+3}, 1, v{t}
    s_lshl_b32 s32, s{S_TB}, 8
    s_lshl_b32 s34, s33, 7
    s_add_u32 s40, s32, s34
    s_lshl_b32 s32, s{S_TB}, 3
    s_lshl_b32 s34, s33, 2
    s_add_u32 s32, s32, s34
    s_mul_i32 s32, s32, 56
    s_lshl_b32 s34, s{S_FB}, 2
    s_add_u32 s32, s32, s34
    s_and_b32 s34, s{S_WAVE}, 2
    s_add_u32 s32, s32, s34
    s_lshl_b32 s32, s32, 10
    s_add_u32 s44, s32, {WS_Z1}
    s_add_u32 s45, s44, 57344
    s_add_u32 s46, s45, 57344
    s_add_u32 s47, s46, 57344
    ''')]
    ex = {}
    zl = []
    for jb in range(4):
        zl.append(('vm', f'buffer_load_ushort v{V_BIAS+jb}, v{t+3}, s[{S_B}:{S_B+3}], s40 offen offset:{jb*32}', 'Z'))
    for jb in range(4):
        for P in range(2):
            z = V_Z + (jb * 2 + P) * 4
            zl.append(('vm', f'buffer_load_dwordx4 v[{z}:{z+3}], v{V_L16}, s[{S_WS}:{S_WS+3}], s{44+jb} offen offset:{P*1024}', 'Z'))
    ex[29] = {2 * n + 1: [zl[n]] for n in range(12)}
    q = Q()
    g.run(k, 32, q, mid, ex, S_IT)
    stamp(k, opt, 2, S_WS, t + 4)
    for jb in range(4): k(f's_add_u32 s{44+jb}, s{44+jb}, {WS_U - WS_Z1}')
    k('s_waitcnt vmcnt(0)')
    for jb in range(4): k(f'v_lshlrev_b32 v{V_BIAS+jb}, 16, v{V_BIAS+jb}')
    for jb in range(4):
        bp = V_BIAS + (jb & 2); sel = jb & 1
        for P in range(2):
            z = V_Z + (jb * 2 + P) * 4; T = 64 + ((jb * 2 + P) & 1) * 8
            regs = [acc(2 * P, jb), acc(2 * P, jb) + 2, acc(2 * P + 1, jb), acc(2 * P + 1, jb) + 2]
            for n, p in enumerate(regs):
                k(f'v_lshlrev_b32 v{T+2*n}, 16, v{z+n}\nv_and_b32 v{T+2*n+1}, 0xffff0000, v{z+n}')
                k(f'v_pk_add_f32 v[{p}:{p+1}], v[{p}:{p+1}], v[{bp}:{bp+1}] op_sel:[0,{sel}] op_sel_hi:[1,{sel}]')
            for n, p in enumerate(regs):
                k(f'v_pk_mul_f32 v[{p}:{p+1}], v[{p}:{p+1}], v[{T+2*n}:{T+2*n+1}]')
            for n, p in enumerate(regs):
                k(f'v_cvt_pk_bf16_f32 v{z+n}, v{p}, v{p+1}')
            k(f'buffer_store_dwordx4 v[{z}:{z+3}], v{V_L16}, s[{S_WS}:{S_WS+3}], s{44+jb} offen offset:{P*1024}')
    stamp(k, opt, 3, S_WS, t + 4)
    k(f'{name}_end:\ns_endpgm')
    return k
```

```python
from core128 import *
S_WS, S_W, S_X, S_OUT = 4, 8, 12, 16
S_WAVE, S_AO, S_BO, S_TB, S_NB, S_IT = 21, 22, 23, 24, 25, 26
V_AD, V_BD, V_AR, V_BR = V0, V0 + 4, V0 + 6, V0 + 14
V_S = 144; V_X = 176
V_L16 = 208; V_OA = 209; V_FL = 210; V_T = 212; V_LANE = 223
LOG2E = 1.4426950408889634

class G4(Core):
    def a_dma(self, st, i): return f'buffer_load_dwordx4 v{V_AD+i}, s[{S_W}:{S_W+3}], s{S_AO} offen offset:{i*1024} lds'
    def b_dma(self, st, i): return f'buffer_load_dwordx4 v{V_BD+(i >> 1)}, s[{S_WS}:{S_WS+3}], s{S_BO} offen offset:{i*1024} lds'
    def inc_a(self): return [('i', f's_add_u32 s{S_AO}, s{S_AO}, {64*2048}')]
    def inc_b(self): return [('i', f's_add_u32 s{S_BO}, s{S_BO}, 2048')]
    def a_read(self, st, kk, j):
        r = FA(kk, j); h = (st >> 1) & 1
        return [f'ds_read_b64_tr_b16 v[{r+2*t}:{r+2*t+1}], v{V_AR+4*h+j} offset:{(st & 1)*STG + A_OFF + (2*kk + t)*4096}' for t in range(2)]
    def b_read(self, st, kk, j):
        r = FB(kk, j); h = (st >> 1) & 1
        return f'ds_read_b128 v[{r}:{r+3}], v{V_BR+h} offset:{(st & 1)*STG + B_OFF + j*2048 + kk*1024}'

def make_k3(name, opt):
    k = Kernel(name, 256, 256, 4 * STG, vgpr=224, sgpr=96)
    g = G4(); t = V_T
    k(f'''
    s_cmp_ge_u32 s2, 256
    s_cbranch_scc1 {name}_end
    s_lshr_b32 s30, s2, 3                   ; idx
    s_and_b32 s31, s2, 7                    ; xcd
    s_and_b32 s27, s30, 1
    s_cmp_eq_u32 s27, 0
    s_cselect_b32 s28, 56, 16
    s_load_dwordx2 s[{S_WS}:{S_WS+1}], s[0:1], 80
    s_load_dwordx2 s[{S_W}:{S_W+1}], s[0:1], s28
    s_load_dwordx2 s[{S_X}:{S_X+1}], s[0:1], 0
    s_load_dwordx2 s[{S_OUT}:{S_OUT+1}], s[0:1], 64
    v_lshrrev_b32 v1, 6, v0
    v_and_b32 v{V_LANE}, 63, v0
    ''')
    srd(k, S_WS, 0, 0x10000000)
    k(f'v_readfirstlane_b32 s{S_WAVE}, v1')
    srd(k, S_X, 0, 4 << 20); srd(k, S_OUT, 0, 4 << 20)
    k(f'''
    s_mov_b32 s32, {1792*2048 + 4096}
    s_cselect_b32 s{S_W+2}, s32, {1024*2048 + 4096}
    s_mov_b32 s{S_W+3}, 0x20000
    s_cselect_b32 s29, 56, 32
    s_mov_b32 s32, {WS_U}
    s_cselect_b32 s{S_BO}, s32, {WS_O}
    s_mov_b32 s{S_AO}, 0
    v_lshlrev_b32 v{V_L16}, 4, v{V_LANE}
    s_lshr_b32 s30, s30, 1
    s_and_b32 s32, s31, 3
    s_lshl_b32 s32, s32, 2
    s_and_b32 s33, s30, 3
    s_add_u32 s{S_TB}, s32, s33
    s_lshr_b32 s32, s31, 2
    s_lshl_b32 s32, s32, 2
    s_lshr_b32 s33, s30, 2
    s_add_u32 s{S_NB}, s32, s33
    s_lshl_b32 s{g.S_LB}, s{S_WAVE}, 12
    s_lshl_b32 s32, s{S_TB}, 3
    s_lshl_b32 s33, s{S_WAVE}, 1
    s_add_u32 s32, s32, s33
    s_lshl_b32 s33, s29, 10
    s_mul_i32 s32, s32, s33
    v_add_u32 v{V_BD}, s32, v{V_L16}
    s_sub_u32 s33, s33, 2048
    v_add_u32 v{V_BD+1}, s33, v{V_BD}
    v_lshrrev_b32 v{t}, 3, v{V_LANE}
    v_bfe_u32 v{t+1}, v{V_LANE}, 4, 2
    v_bfe_u32 v{t+2}, v{V_LANE}, 1, 2
    v_xor_b32 v{t+1}, v{t+1}, v{t+2}
    v_and_b32 v{t+2}, 1, v{V_LANE}
    v_lshlrev_b32 v{t+2}, 4, v{t+2}
    v_lshl_add_u32 v{t+1}, v{t+1}, 5, v{t+2}
    v_lshl_add_u32 v{t+1}, v{t}, 11, v{t+1}
    s_lshl_b32 s32, s{S_WAVE}, 15
    s_lshl_b32 s33, s{S_NB}, 8
    s_add_u32 s32, s32, s33
    s_add_u32 s32, s32, 4096
    v_add_u32 v{V_AD}, s32, v{t+1}
    v_add_u32 v{V_AD+1}, {16384 - 1024}, v{V_AD}
    v_subrev_u32 v{V_AD+2}, {2048 - 128}, v{V_AD}
    v_add_u32 v{V_AD+3}, {16384 + 128 - 3072}, v{V_AD}
    s_waitcnt lgkmcnt(0)
    s_sub_u32 s{S_W}, s{S_W}, 4096
    s_subb_u32 s{S_W+1}, s{S_W+1}, 0
    ''')
    stamp(k, opt, 0, S_WS, t)
    if opt.get('stamp'): k('s_waitcnt vmcnt(0)')
    midtxt = f'''
    v_lshrrev_b32 v{t}, 2, v{V_LANE}
    v_bfe_u32 v{t+1}, v{V_LANE}, 3, 2
    v_and_b32 v{t+2}, 3, v{V_LANE}
    v_lshlrev_b32 v{t+2}, 3, v{t+2}
    v_lshl_add_u32 v{t+2}, v{t}, 7, v{t+2}
    s_lshr_b32 s32, s{S_WAVE}, 1
    s_lshl_b32 s32, s32, 11
    v_add_u32 v{t+2}, s32, v{t+2}
    '''
    for j in range(4):
        midtxt += f'''v_xor_b32 v{t+3}, {j}, v{t+1}
        v_lshl_add_u32 v{V_AR+j}, v{t+3}, 5, v{t+2}
        v_add_u32 v{V_AR+4+j}, 0x10000, v{V_AR+j}
        '''
    midtxt += f'''
    s_and_b32 s33, s{S_WAVE}, 1
    s_lshl_b32 s32, s33, 13
    v_add_u32 v{V_BR}, s32, v{V_L16}
    v_add_u32 v{V_BR+1}, 0x10000, v{V_BR}
    s_lshl_b32 s32, s{S_TB}, 3
    s_add_u32 s32, s32, s{S_NB}
    s_lshl_b32 s32, s32, 2
    s_add_u32 s32, s32, s{S_WAVE}
    s_lshl_b32 s34, s32, 13
    s_add_u32 s40, s34, {WS_S}
    s_add_u32 s41, s40, 4096
    s_lshl_b32 s34, s32, 6
    s_add_u32 s42, s34, {WS_FLAG}
    v_and_b32 v{t}, 15, v{V_LANE}
    v_bfe_u32 v{t+1}, v{V_LANE}, 4, 1
    v_lshlrev_b32 v{t+1}, 5, v{t+1}
    v_lshl_add_u32 v{t}, v{t}, 11, v{t+1}
    v_lshrrev_b32 v{t+1}, 5, v{V_LANE}
    v_lshl_add_u32 v{V_OA}, v{t+1}, 4, v{t}
    s_lshl_b32 s32, s{S_TB}, 18
    s_lshl_b32 s34, s33, 17
    s_add_u32 s32, s32, s34
    s_lshl_b32 s34, s{S_NB}, 8
    s_add_u32 s32, s32, s34
    s_lshr_b32 s34, s{S_WAVE}, 1
    s_lshl_b32 s34, s34, 7
    s_add_u32 s44, s32, s34
    s_add_u32 s45, s44, 32768
    s_add_u32 s46, s45, 32768
    s_add_u32 s47, s46, 32768
    v_mov_b32 v{V_FL+1}, 0
    '''
    mid = [('i', midtxt)]
    k(f's_cmp_eq_u32 s27, 0\ns_cbranch_scc1 {name}_cons')
    q = Q()
    g.run(k, 16, q, mid, {}, S_IT)
    stamp(k, opt, 2, S_WS, t + 4)
    k('s_nop 7')
    for jb in range(4):
        for P in range(2):
            a, b = acc(2 * P, jb), acc(2 * P + 1, jb)
            k(f'''v_cvt_pk_bf16_f32 v{a}, v{a}, v{a+1}
            v_cvt_pk_bf16_f32 v{a+1}, v{a+2}, v{a+3}
            v_cvt_pk_bf16_f32 v{a+2}, v{b}, v{b+1}
            v_cvt_pk_bf16_f32 v{a+3}, v{b+2}, v{b+3}''')
        k('s_nop 1')
        for P in range(2):
            a = acc(2 * P, jb); n = jb * 2 + P
            k(f'v_permlane16_swap_b32 v{a}, v{a+2}\nv_permlane16_swap_b32 v{a+1}, v{a+3}')
            k(f'buffer_store_dwordx4 v[{a}:{a+3}], v{V_L16}, s[{S_WS}:{S_WS+3}], s{40 + (n >> 2)} offen offset:{(n & 3)*1024} sc1')
    k(f'''v_mov_b32 v{V_FL}, 1
    s_waitcnt vmcnt(0)
    s_mov_b64 exec, 1
    buffer_store_dword v{V_FL}, v{V_FL+1}, s[{S_WS}:{S_WS+3}], s42 offen sc1
    s_mov_b64 exec, -1''')
    stamp(k, opt, 3, S_WS, t + 4)
    k(f's_endpgm\n{name}_cons:')
    q = Q()
    fl = f'buffer_load_dword v{V_FL}, v{V_FL+1}, s[{S_WS}:{S_WS+3}], s42 offen sc1'
    chk = [('wv', 'F'), ('i', f'''v_readfirstlane_b32 s35, v{V_FL}
    s_mov_b32 s36, 0x40000
    s_cmp_lg_u32 s35, 0
    s_cbranch_scc1 {name}_got
    {name}_spin:
    {fl}
    s_waitcnt vmcnt(0)
    v_readfirstlane_b32 s35, v{V_FL}
    s_sub_u32 s36, s36, 1
    s_cbranch_scc1 {name}_got
    s_cmp_eq_u32 s35, 0
    s_cbranch_scc1 {name}_spin
    {name}_got:''')]
    ex = {23: {3: [('vm', fl, 'F')]}, 25: {15: chk}}
    sl = []; xl = []
    for n in range(8):
        sl.append(('vm', f'buffer_load_dwordx4 v[{V_S+4*n}:{V_S+4*n+3}], v{V_L16}, s[{S_WS}:{S_WS+3}], s{40 + (n >> 2)} offen offset:{(n & 3)*1024} sc1', 'S'))
        xl.append(('vm', f'buffer_load_dwordx4 v[{V_X+4*n}:{V_X+4*n+3}], v{V_OA}, s[{S_X}:{S_X+3}], s{44 + (n >> 1)} offen offset:{(n & 1)*64}', 'S'))
    for n in range(8):
        ex[25][19 + n] = [xl[n]]
    ex[26] = {2 * n + 1: [sl[n]] for n in range(8)}
    g.run(k, 28, q, mid, ex, S_IT)
    stamp(k, opt, 2, S_WS, t + 4)
    k(f'v_mov_b32 v{t}, {f2u(-LOG2E):#x}\ns_waitcnt vmcnt(0)\ns_nop 7')
    for jb in range(4):
        for P in range(2):
            n = jb * 2 + P; a, b = acc(2 * P, jb), acc(2 * P + 1, jb)
            T = 64 + (n & 1) * 24; U = T + 8; W = T + 16
            for r in range(4): k(f'v_permlane16_swap_b32 v{a+r}, v{b+r}')
            H = [a, a + 2, b, b + 2]
            for i, p in enumerate(H): k(f'v_pk_mul_f32 v[{T+2*i}:{T+2*i+1}], v[{p}:{p+1}], v[{t}:{t+1}] op_sel_hi:[1,0]')
            for i in range(8): k(f'v_exp_f32 v{T+i}, v{T+i}')
            for i in range(4):
                k(f'v_lshlrev_b32 v{U+2*i}, 16, v{V_S+4*n+i}\nv_and_b32 v{U+2*i+1}, 0xffff0000, v{V_S+4*n+i}')
                k(f'v_pk_add_f32 v[{T+2*i}:{T+2*i+1}], v[{T+2*i}:{T+2*i+1}], 1.0 op_sel_hi:[1,0]')
            for i in range(8): k(f'v_rcp_f32 v{T+i}, v{T+i}')
            for i, p in enumerate(H):
                k(f'v_lshlrev_b32 v{W+2*i}, 16, v{V_X+4*n+i}\nv_and_b32 v{W+2*i+1}, 0xffff0000, v{V_X+4*n+i}')
                k(f'v_pk_mul_f32 v[{p}:{p+1}], v[{p}:{p+1}], v[{T+2*i}:{T+2*i+1}]')
            for i, p in enumerate(H):
                k(f'v_pk_fma_f32 v[{p}:{p+1}], v[{p}:{p+1}], v[{U+2*i}:{U+2*i+1}], v[{W+2*i}:{W+2*i+1}]')
            for i, p in enumerate(H): k(f'v_cvt_pk_bf16_f32 v{V_X+4*n+i}, v{p}, v{p+1}')
            k(f'buffer_store_dwordx4 v[{V_X+4*n}:{V_X+4*n+3}], v{V_OA}, s[{S_OUT}:{S_OUT+3}], s{44+jb} offen offset:{P*64}')
    stamp(k, opt, 3, S_WS, t + 4)
    k(f'{name}_end:\ns_endpgm')
    return k
```

```python
class Q:
    def __init__(self):
        self.l = []; self.v = []
    def clone(self):
        q = Q(); q.l = list(self.l); q.v = list(self.v); return q

def _need(lst, tag):
    tags = tag if isinstance(tag, list) else [tag]
    idx = -1
    for i, t in enumerate(lst):
        if t in tags: idx = i
    if idx < 0: return None
    return len(lst) - 1 - idx

def resolve(ops, q):
    out = []; counts = []
    for op in ops:
        k = op[0]
        if k == 'i': out.append(op[1])
        elif k == 'lds': out.append(op[1]); q.l.append(op[2])
        elif k == 'vm': out.append(op[1]); q.v.append(op[2])
        elif k in ('wl', 'wv', 'wlv'):
            lt = op[1] if k in ('wl', 'wlv') else None
            vt = op[1] if k == 'wv' else (op[2] if k == 'wlv' else None)
            nl = _need(q.l, lt) if lt is not None else None
            nv = _need(q.v, vt) if vt is not None else None
            if nl is not None: nl = min(nl, 15); q.l = q.l[len(q.l) - nl:] if nl else []
            if nv is not None: nv = min(nv, 63); q.v = q.v[len(q.v) - nv:] if nv else []
            counts.append((nl, nv))
            s = []
            if nv is not None: s.append(f'vmcnt({nv})')
            if nl is not None: s.append(f'lgkmcnt({nl})')
            if s: out.append('s_waitcnt ' + ' '.join(s))
        else: raise ValueError(op)
    return out, counts

def verify(ops, q, counts):
    ci = 0
    for op in ops:
        k = op[0]
        if k == 'lds': q.l.append(op[2])
        elif k == 'vm': q.v.append(op[2])
        elif k in ('wl', 'wv', 'wlv'):
            nl, nv = counts[ci]; ci += 1
            if nl is not None: q.l = q.l[len(q.l) - nl:] if nl and len(q.l) > nl else (q.l if nl else [])
            if nv is not None: q.v = q.v[len(q.v) - nv:] if nv and len(q.v) > nv else (q.v if nv else [])
            lt = op[1] if k in ('wl', 'wlv') else None
            vt = op[1] if k == 'wv' else (op[2] if k == 'wlv' else None)
            if lt is not None: assert _need(q.l, lt) is None, ('lds wait insufficient', op, q.l)
            if vt is not None: assert _need(q.v, vt) is None, ('vm wait insufficient', op, q.v)

def loop_resolve(body_fn, its, q):
    counts = None
    for _ in range(4):
        qq = q.clone(); best = None
        for it in its:
            ops = body_fn(it)
            if counts is None:
                _, c = resolve(ops, qq)
            else:
                c = []
                ci = 0
                for op in ops:
                    k = op[0]
                    if k == 'lds': qq.l.append(op[2])
                    elif k == 'vm': qq.v.append(op[2])
                    elif k in ('wl', 'wv', 'wlv'):
                        lt = op[1] if k in ('wl', 'wlv') else None
                        vt = op[1] if k == 'wv' else (op[2] if k == 'wlv' else None)
                        nl = _need(qq.l, lt) if lt is not None else None
                        nv = _need(qq.v, vt) if vt is not None else None
                        if nl is not None: nl = min(nl, 15)
                        if nv is not None: nv = min(nv, 63)
                        c.append((nl, nv))
                        fl, fv = counts[ci]; ci += 1
                        fl = nl if fl is None else (fl if nl is None else min(fl, nl))
                        fv = nv if fv is None else (fv if nv is None else min(fv, nv))
                        if fl is not None and len(qq.l) > fl: qq.l = qq.l[len(qq.l) - fl:] if fl else []
                        if fv is not None and len(qq.v) > fv: qq.v = qq.v[len(qq.v) - fv:] if fv else []
            if best is None: best = list(c)
            else:
                best = [(a[0] if b[0] is None else (b[0] if a[0] is None else min(a[0], b[0])),
                         a[1] if b[1] is None else (b[1] if a[1] is None else min(a[1], b[1]))) for a, b in zip(best, c)]
        if counts is not None:
            best = [(a[0] if b[0] is None else (b[0] if a[0] is None else min(a[0], b[0])),
                     a[1] if b[1] is None else (b[1] if a[1] is None else min(a[1], b[1]))) for a, b in zip(best, counts)]
        if best == counts: break
        counts = best
    text = None
    for it in its:
        ops = body_fn(it)
        verify(ops, q, counts)
        t = []; ci = 0
        for op in ops:
            if op[0] in ('i', 'lds', 'vm'): t.append(op[1])
            else:
                nl, nv = counts[ci]; ci += 1
                s = []
                if nv is not None: s.append(f'vmcnt({nv})')
                if nl is not None: s.append(f'lgkmcnt({nl})')
                if s: t.append('s_waitcnt ' + ' '.join(s))
        if text is None: text = t
        else: assert text == t, 'loop body text differs between iterations'
    return text
```

```python
import sys, json
from common import *
from k0 import make_k0
from k1 import K1
from k2 import make_k2
from k3 import make_k3
def gen(opt):
    st = opt.get('stamp')
    o = lambda i: dict(opt, stamp_slot=i)
    ks = [make_k0('k0_kernel', o(0)), K1('k1_kernel', o(1)).build(), make_k2('k2_kernel', o(2)), make_k3('k3_kernel', o(3))]
    return build(ks)
if __name__ == '__main__':
    out = sys.argv[1]
    opt = eval(sys.argv[2]) if len(sys.argv) > 2 else {}
    open(out, 'w').write(gen(opt))
```

```python
from asmlib import *
from sched import *
WS_XN = 0
WS_PQ = 4 << 20
WS_O = 8 << 20
WS_Z1 = 12 << 20
WS_Z2 = 20 << 20
WS_U = 28 << 20
WS_KVP = 36 << 20
WS_ST = 38 << 20
WS_FLAG = 39 << 20
WS_S = 40 << 20
WS_RAW = 64 << 20
WS_RES = 128 << 20

def srd(k, s, slot, size):
    k(f's_mov_b32 s{s+2}, {size}\ns_mov_b32 s{s+3}, 0x20000')

def f2u(x):
    import struct
    return struct.unpack('<I', struct.pack('<f', x))[0]

def round_bf16(k, v, tmp=None):
    k(f'v_cvt_pk_bf16_f32 v{v}, v{v}, v{v}\nv_lshlrev_b32 v{v}, 16, v{v}')

def ln_finish(k, vs, vq, n, vt):
    k(f'''
    v_mul_f32 v{vs}, {f2u(1.0/n):#x}, v{vs}
    v_mul_f32 v{vq}, {f2u(1.0/n):#x}, v{vq}
    v_fma_f32 v{vq}, -v{vs}, v{vs}, v{vq}
    v_max_f32 v{vq}, 0, v{vq}
    ''')
    round_bf16(k, vq)
    k(f'v_add_f32 v{vq}, {f2u(1e-5):#x}, v{vq}')
    round_bf16(k, vq)
    k(f'v_sqrt_f32 v{vq}, v{vq}')
    round_bf16(k, vs)
    round_bf16(k, vq)
    k(f'v_rcp_f32 v{vq}, v{vq}\ns_nop 0')

def stamp_begin(k, opt, s0=90):
    if opt.get('stamp'): k(f's_memrealtime s[{s0}:{s0+1}]')

def stamp(k, opt, idx, sws, vt, s0=88):
    if not opt.get('stamp'): return
    assert vt % 2 == 0
    k(f'''s_memrealtime s[{s0}:{s0+1}]
    s_memtime s[{s0+2}:{s0+3}]
    s_waitcnt lgkmcnt(0)
    v_mov_b32 v{vt}, s{s0}
    v_mov_b32 v{vt+1}, s{s0+2}
    s_lshl_b32 s{s0+1}, s2, 6
    s_add_u32 s{s0+1}, s{s0+1}, {WS_RES + opt['stamp_slot'] * 16384 + idx * 8}
    buffer_store_dwordx2 v[{vt}:{vt+1}], off, s[{sws}:{sws+3}], s{s0+1}''')
```

```python
from common import *
STG = 32768
A_OFF, B_OFF = 0, 16384
def acc(ja, jb): return (ja * 4 + jb) * 4
def FA(s, j): return 64 + s * 16 + j * 4
def FB(s, j): return 96 + s * 16 + j * 4
V0 = 128

class Core:
    S_LB = 20
    st2 = None
    loop_extra = {}
    def m0(self, st, off): return ('i', f's_add_u32 m0, s{self.S_LB}, {(st & 3) * STG + off}')
    def dmas(self, st):
        return ([self.m0(st, A_OFF)] + [('vm', self.a_dma(st, i), ('D', st)) for i in range(4)],
                [self.m0(st, B_OFF)] + [('vm', self.b_dma(st, i), ('D', st)) for i in range(4)])
    def reads(self, st, kk):
        A = lambda j: [('lds', t, ('A', st, kk, j)) for t in self.a_read(st, kk, j)]
        B = lambda j: [('lds', self.b_read(st, kk, j), ('B', st, kk, j))]
        first = 0 if True else 3
        return B(0) + A(0) + B(1) + B(2) + B(3) + A(1) + A(2) + A(3)
    def stage(self, st, nst, extra=None):
        gaps = [[] for _ in range(32)]; pre = [[] for _ in range(32)]
        for n, r in enumerate(self.reads(st, 1)): gaps[n].append(r)
        if st + 1 < nst:
            gaps[17] += [('wlv', [('A', st, 1, 3)], ('D', st + 1)), ('i', 's_barrier')]
            if self.st2 is not None:
                gaps[17].append(('i', f's_mov_b32 s87, m0\ns_mov_b32 m0, s86\ns_add_u32 s86, s86, 1\nv_writelane_b32 v{self.st2}, s84, m0\ns_memtime s[84:85]\ns_mov_b32 m0, s87'))
            for n, r in enumerate(self.reads(st + 1, 0)): gaps[18 + n].append(r)
        if st + 4 < nst:
            a, _ = self.dmas(st + 4)
            gaps[18].append(a[0])
            for n, p in enumerate((19, 22, 25, 28)): gaps[p].append(a[1 + n])
            gaps[30] += self.inc_a()
        if st + 3 < nst and st >= 1:
            _, b = self.dmas(st + 3)
            gaps[0].append(b[0])
            for n, p in enumerate((1, 5, 9, 13)): gaps[p].append(b[1 + n])
            gaps[15] += self.inc_b()
        seen = set(); ops = []
        for m in range(32):
            kk = m >> 4; ja = (m >> 2) & 3; jb = m & 3
            if ja & 1: jb = 3 - jb
            need = [t for t in (('A', st, kk, ja), ('B', st, kk, jb)) if t not in seen]
            seen.update(need)
            if need: ops.append(('wl', need))
            d = acc(ja, jb); a = FA(kk, ja); b = FB(kk, jb)
            ops.append(('i', f'v_mfma_f32_16x16x32_bf16 v[{d}:{d+3}], v[{a}:{a+3}], v[{b}:{b+3}], v[{d}:{d+3}]'))
            ops += gaps[m]
            if extra and m in extra: ops += extra[m]
        return ops
    def prologue_ops(self, mid):
        ops = []
        for st in range(4):
            a, b = self.dmas(st)
            ops += [a[0], ('i', 's_nop 0')] + a[1:] + self.inc_a() + [b[0], ('i', 's_nop 0')] + b[1:] + self.inc_b()
        ops += mid
        for r in range(64): ops.append(('i', f'v_mov_b32 v{r}, 0'))
        ops += [('wv', ('D', 0)), ('i', 's_barrier')]
        ops += self.reads(0, 0)
        return ops
    def run(self, k, nst, q, mid, extras, s_it, st1=None):
        if self.st2 is not None: k('s_mov_b32 s86, 0\ns_mov_b32 s84, 0')
        t, _ = resolve(self.prologue_ops(mid), q)
        k('\n'.join(t))
        if st1: st1(); q.v.append('st'); q.l = []
        t, _ = resolve(self.stage(0, nst), q)
        k('\n'.join(t))
        first_special = min([nst - 4] + list(extras.keys()))
        nit = (first_special - 1) // 4
        body = lambda it: sum([self.stage(1 + 4 * it + x, nst, self.loop_extra.get(x)) for x in range(4)], [])
        if nit > 0:
            lab = k.label('loop')
            k(f's_mov_b32 s{s_it}, {nit}')
            t = loop_resolve(body, range(nit), q)
            k(f'.p2align 4\n{lab}:')
            k('\n'.join(t))
            k(f's_sub_u32 s{s_it}, s{s_it}, 1\ns_cmp_lg_u32 s{s_it}, 0\ns_cbranch_scc1 {lab}')
        ops = []
        for st in range(1 + 4 * nit, nst): ops += self.stage(st, nst, extras.get(st))
        t, _ = resolve(ops, q)
        k('\n'.join(t))
    def st2_out(self, k, opt, sws, vl16):
        if self.st2 is None: return
        k(f'''s_lshl_b32 s87, s2, 10
        s_add_u32 s87, s87, {WS_RES + (1 << 20) + opt['stamp_slot'] * 262144}
        buffer_store_dword v{self.st2}, v{vl16}, s[{sws}:{sws+3}], s87 offen''')
```

```python
from common import *

def acc(j, rb): return (j * 4 + rb) * 4
V_XD = 208
V_WD = 216
V_PR = 222
V_WR = 226
V_PR2, V_WR2 = 234, 238
V_T = 246
A_W = 0
A_X = 52
L_WS = 13312
S_X, S_WQ, S_WW, S_WS = 4, 8, 12, 16
S_XO, S_QO, S_WO = 20, 21, 22
S_WB = 24
S_WAVE, S_RG, S_CG, S_P, S_IT = 29, 30, 31, 32, 33
S_DB = 40
NSUB = 32

class K1:
    def __init__(self, name, opt):
        self.name = name; self.opt = opt
        self.RD = RD = opt.get('RD', 4)
        self.L_DUM = RD * L_WS
        self.L_KV = self.L_DUM + 1024
        lds = self.L_KV + 49152
        self.k = Kernel(name, 256, 256, lds, vgpr=256 + 52 + RD * 16, sgpr=96, accum=256)
    def xf(self, u, rb): return A_X + (u % self.RD) * 16 + rb * 4
    def wf(self, j): return A_W + j * 4
    def mfma(self, typ, j, rb, u):
        d = acc(j, rb); x = self.xf(u, rb); w = self.wf(j)
        a, b = (x, w) if (typ == 'E' and j < 8) else (w, x)
        return ('i', f'v_mfma_f32_16x16x32_bf16 v[{d}:{d+3}], a[{a}:{a+3}], a[{b}:{b+3}], v[{d}:{d+3}]')
    def wread(self, typ, u, j):
        slot = u % self.RD
        hi = slot >= 4
        base = (slot & 3) * L_WS
        npan = 8 if typ == 'E' else 4
        U = 13 - npan
        ops = []
        for t in range(2):
            r = self.wf(j) + 2 * t
            if j < npan:
                off = base + (j >> 2) * 4096 + 512 * t; v = (V_PR2 if hi else V_PR) + (j & 3)
            else:
                c = 4 * U * t + (j - npan)
                off = base + npan * 1024 + 256 * (c >> 3); v = (V_WR2 if hi else V_WR) + (c & 7)
            ops.append(('lds', f'ds_read_b64_tr_b16 a[{r}:{r+1}], v{v} offset:{off}', ('W', u, j)))
        return ops
    def wdma(self, typ, u, slot):
        ring = (u % self.RD) * L_WS
        if typ == 'E':
            lo, sr, so = [(0, S_WQ, S_QO), (4096, S_WQ, S_QO), (8192, S_WW, S_WO), (None, S_WW, S_WO)][slot]
        else:
            lo, sr, so = [(0, S_WQ, S_QO), (4096, S_WW, S_WO), (8192, S_WW, S_WO), (None, S_WW, S_WO)][slot]
        m = f's_add_u32 m0, s{S_WB}, {ring + lo}' if lo is not None else f's_mov_b32 m0, s{S_DB + (u % self.RD)}'
        return [('i', m), ('vm', f'buffer_load_dwordx4 v{V_WD+slot}, s[{sr}:{sr+3}], s{so} offen lds', ('Wd', u))]
    def xload(self, u, rb):
        r = self.xf(u, rb)
        return ('vm', f'buffer_load_dwordx4 a[{r}:{r+3}], v{V_XD+rb}, s[{S_X}:{S_X+3}], s{S_XO} offen', ('Xd', u))
    def incs(self):
        return [('i', f's_add_u32 s{S_QO}, s{S_QO}, {32*6144}'), ('i', f's_add_u32 s{S_WO}, s{S_WO}, {32*7168}'), ('i', f's_add_u32 s{S_XO}, s{S_XO}, 1024')]
    def substep(self, typ, u):
        RD = self.RD
        gaps = [[] for _ in range(52)]; pre = [[] for _ in range(52)]
        for j in range(9):
            r = self.wread(typ, u, j + 4)
            gaps[4 * j].append(r[0]); gaps[4 * j + 1].append(r[1])
        if u + 1 < NSUB:
            nxt = sum([self.wread(typ, u + 1, j) for j in range(4)], [])
            for n, r in enumerate(nxt): gaps[40 + n].append(r)
            gaps[39] += [('wlv', [('W', u, 12)], [('Wd', u + 1), ('Xd', u + 1)]), ('i', 's_barrier')]
        for j in range(13): pre[4 * j].append(('wl', [('W', u, j)]))
        un = u + RD - 1
        if un < NSUB:
            for s in range(4):
                d = self.wdma(typ, un, s)
                gaps[8 * s + 2].append(d[0]); gaps[8 * s + 3].append(d[1])
                gaps[8 * s + 7].append(self.xload(un, s))
            inc = self.incs()
            gaps[34].append(inc[0]); gaps[35].append(inc[1]); gaps[38].append(inc[2])
        if u == 29 and self.opt.get('pf1', 1):
            gaps[3].append(('vm', f'buffer_load_dword v{V_T+8}, v{V_XD+4}, s[68:71], s80 offen', 'pf'))
            gaps[11].append(('vm', f'buffer_load_dword v{V_T+8}, v{V_XD+5}, s[72:75], s81 offen', 'pf'))
            gaps[19].append(('vm', f'buffer_load_dword v{V_T+8}, v{V_XD+6}, s[76:79], s82 offen', 'pf'))
        ops = []
        for m in range(52):
            ops += pre[m]
            j, rb = m >> 2, m & 3
            if (j + (u & 1)) & 1: rb = 3 - rb
            ops.append(self.mfma(typ, j, rb, u))
            ops += gaps[m]
        return ops
    def setup(self, typ):
        k = self.k; U = 5 if typ == 'E' else 9; t = V_T
        k(f'''
        v_lshrrev_b32 v{t}, 3, v255
        s_lshl_b32 s34, s{S_WAVE}, 3
        v_add_u32 v{t+1}, s34, v{t}                 ; k
        v_bfe_u32 v{t+2}, v{t+1}, 1, 1
        v_bfe_u32 v{t+3}, v{t+1}, 3, 1
        v_lshl_or_b32 v{t+2}, v{t+3}, 1, v{t+2}     ; f
        v_bfe_u32 v{t+3}, v255, 1, 2
        v_xor_b32 v{t+2}, v{t+2}, v{t+3}            ; j
        v_and_b32 v{t+3}, 1, v255
        v_lshlrev_b32 v{t+3}, 4, v{t+3}
        v_lshl_or_b32 v{t+2}, v{t+2}, 5, v{t+3}
        v_mul_u32_u24 v{t+1}, 6144, v{t+1}
        v_add_u32 v{t+1}, v{t+1}, v{t+2}
        s_lshl_b32 s34, s{S_P}, 7
        ''')
        if typ == 'E':
            k(f'''s_add_u32 s35, s34, 2048
            v_add_u32 v{V_WD}, s35, v{t+1}
            s_add_u32 s35, s34, 4096
            v_add_u32 v{V_WD+1}, s35, v{t+1}''')
            wslots = [(2, 0, False), (3, 4, True)]; wcol = 0
        else:
            k(f'v_add_u32 v{V_WD}, s34, v{t+1}')
            wslots = [(1, 0, False), (2, 4, False), (3, 8, True)]; wcol = 160
        k(f's_mul_i32 s35, s{S_P}, 448')
        if wcol: k(f's_add_u32 s35, s35, {wcol}')
        magic = {5: 52429, 9: 58255}[U]; sh = {5: 18, 9: 19}[U]; mg8 = {5: 13108, 9: 7282}[U]
        for slot, n0, only0 in wslots:
            if only0: k(f's_mov_b32 s34, {32*n0}')
            else: k(f's_lshl_b32 s34, s{S_WAVE}, 5\n s_add_u32 s34, s34, {32*n0}')
            k(f'''
            v_lshrrev_b32 v{t}, 1, v255
            v_add_u32 v{t}, s34, v{t}                  ; pos
            v_mul_u32_u24 v{t+1}, {mg8}, v{t}
            v_bfe_u32 v{t+1}, v{t+1}, 19, 1
            v_lshlrev_b32 v{t+1}, 2, v{t+1}
            v_xor_b32 v{t}, v{t}, v{t+1}               ; u
            v_mul_u32_u24 v{t+1}, {magic}, v{t}
            v_lshrrev_b32 v{t+1}, {sh}, v{t+1}         ; k
            v_mul_u32_u24 v{t+2}, {U}, v{t+1}
            v_sub_u32 v{t+2}, v{t}, v{t+2}             ; j
            v_mul_u32_u24 v{t+1}, 7168, v{t+1}
            v_lshl_add_u32 v{t+1}, v{t+2}, 5, v{t+1}
            v_and_b32 v{t+2}, 1, v255
            v_lshl_add_u32 v{t+1}, v{t+2}, 4, v{t+1}
            v_add_u32 v{V_WD+slot}, s35, v{t+1}
            ''')
            if only0:
                k(f'''s_cmp_eq_u32 s{S_WAVE}, 0
                s_cselect_b32 s34, -1, 0
                v_and_b32 v{V_WD+slot}, s34, v{V_WD+slot}
                s_mov_b32 s36, {self.L_DUM}''')
                for r in range(self.RD):
                    k(f's_cselect_b32 s{S_DB+r}, {r*L_WS + 12288}, s36')
    def setup2(self, typ):
        U = 5 if typ == 'E' else 9; t = V_T
        o = f'''
        v_lshrrev_b32 v{t}, 4, v255
        v_bfe_u32 v{t+1}, v255, 2, 2
        v_lshl_add_u32 v{t+1}, v{t}, 3, v{t+1}      ; k0
        v_mul_u32_u24 v{t+2}, {U}, v{t+1}           ; a
        v_and_b32 v{t+3}, 1, v{t}
        v_lshlrev_b32 v{t+3}, 2, v{t+3}             ; x
        v_and_b32 v{t+4}, 3, v255
        v_lshlrev_b32 v{t+4}, 3, v{t+4}
        '''
        for e in range(8):
            o += f'''v_add_u32 v{t+5}, {e}, v{t+2}
            v_xor_b32 v{t+5}, v{t+5}, v{t+3}
            v_lshl_add_u32 v{V_WR+e}, v{t+5}, 5, v{t+4}
            '''
        o += f'''
        v_bfe_u32 v{t+5}, v255, 3, 1
        v_lshrrev_b32 v{t+3}, 1, v{t+3}
        v_or_b32 v{t+5}, v{t+5}, v{t+3}             ; f
        v_lshl_add_u32 v{t+4}, v{t+1}, 7, v{t+4}
        '''
        for j in range(4):
            o += f'''v_xor_b32 v{t+6}, {j}, v{t+5}
            v_lshl_add_u32 v{V_PR+j}, v{t+6}, 5, v{t+4}
            '''
        o += f'''
        v_lshlrev_b32 v{V_XD+4}, 7, v255
        v_min_u32 v{V_XD+5}, {27*128}, v{V_XD+4}
        v_min_u32 v{V_XD+6}, {15*128}, v{V_XD+4}
        s_lshl_b32 s34, s2, 2
        s_add_u32 s34, s34, s{S_WAVE}
        s_lshl_b32 s80, s34, 13
        s_mul_i32 s81, s34, {28*128}
        s_lshl_b32 s82, s34, 11
        '''
        if self.RD > 4:
            for j in range(12): o += f'v_add_u32 v{V_PR2+j}, {4*L_WS}, v{V_PR+j}\n'
        return o
    def mainloop(self, typ):
        k = self.k; RD = self.RD; q = Q(); ops = []
        for u in range(RD - 1):
            for s in range(4):
                d = self.wdma(typ, u, s)
                ops += [d[0], self.xload(u, s), d[1]]
            ops += self.incs()
        ops.append(('i', self.setup2(typ)))
        for r in range(208): ops.append(('i', f'v_mov_b32 v{r}, 0'))
        ops += [('wv', [('Wd', 0), ('Xd', 0)]), ('i', 's_barrier')]
        for j in range(4): ops += self.wread(typ, 0, j)
        t, _ = resolve(ops, q)
        k('\n'.join(t))
        if self.opt.get('stamp'):
            stamp(k, self.opt, 1, S_WS, V_T); q.v.append('st'); q.l = []
        nit = NSUB // RD
        k(f's_mov_b32 s{S_IT}, {nit - 1}')
        lab = k.label('loop')
        body = lambda it: sum([self.substep(typ, RD * it + x) for x in range(RD)], [])
        t = loop_resolve(body, range(nit - 1), q)
        k(f'.p2align 4\n{lab}:')
        k('\n'.join(t))
        k(f's_sub_u32 s{S_IT}, s{S_IT}, 1\ns_cmp_lg_u32 s{S_IT}, 0\ns_cbranch_scc1 {lab}')
        t, _ = resolve(body(nit - 1), q)
        k('\n'.join(t))
        stamp(k, self.opt, 2, S_WS, V_T)
    def prologue(self):
        k = self.k; name = self.name
        k(f'''
        s_cmp_ge_u32 s2, 256
        s_cbranch_scc1 {name}_end
        s_load_dwordx2 s[{S_X}:{S_X+1}], s[0:1], 80
        s_load_dwordx2 s[{S_WQ}:{S_WQ+1}], s[0:1], 8
        s_load_dwordx2 s[{S_WW}:{S_WW+1}], s[0:1], 32
        s_load_dwordx2 s[{S_WS}:{S_WS+1}], s[0:1], 80
        s_load_dwordx2 s[68:69], s[0:1], 40
        s_load_dwordx2 s[72:73], s[0:1], 56
        s_load_dwordx2 s[76:77], s[0:1], 16
        v_lshrrev_b32 v1, 6, v0
        v_and_b32 v255, 63, v0
        ''')
        srd(k, 68, 0, 8 << 20); srd(k, 72, 0, 1792 * 2048); srd(k, 76, 0, 2 << 20)
        srd(k, S_X, 0, 4 << 20)
        k(f'v_readfirstlane_b32 s{S_WAVE}, v1')
        srd(k, S_WQ, 0, 1024 * 6144); srd(k, S_WW, 0, 1024 * 7168); srd(k, S_WS, 0, 0x10000000)
        k(f'''
        s_and_b32 s34, s2, 1
        s_lshl_b32 s34, s34, 2
        s_bfe_u32 s35, s2, 0x20003
        s_add_u32 s{S_RG}, s34, s35
        s_bfe_u32 s34, s2, 0x20001
        s_lshl_b32 s34, s34, 3
        s_lshr_b32 s35, s2, 5
        s_add_u32 s{S_CG}, s34, s35
        s_lshr_b32 s{S_P}, s{S_CG}, 1
        s_lshl_b32 s{S_WB}, s{S_WAVE}, 10
        s_mov_b32 s{S_XO}, 0
        s_mov_b32 s{S_QO}, 0
        s_mov_b32 s{S_WO}, 0
        s_lshl_b32 s34, s{S_RG}, 19
        s_lshl_b32 s35, s{S_WAVE}, 17
        s_add_u32 s34, s34, s35
        v_lshl_add_u32 v{V_XD}, v255, 4, s34
        ''')
        for i in range(1, 4): k(f'v_add_u32 v{V_XD+i}, {i*32768}, v{V_XD}')
    def build(self):
        from k1epi import epilogue
        k = self.k; name = self.name
        self.prologue()
        k(f's_bitcmp1_b32 s{S_CG}, 0\ns_cbranch_scc1 {name}_O')
        for typ in 'EO':
            if typ == 'O': k(f'{name}_O:')
            self.setup(typ)
            k('s_waitcnt lgkmcnt(0)')
            stamp(k, self.opt, 0, S_WS, V_T)
            if self.opt.get('stamp'): k('s_waitcnt vmcnt(0)')
            self.mainloop(typ)
            epilogue(self, typ)
            stamp(k, self.opt, 6, S_WS, V_T)
            k('s_endpgm')
        k(f'{name}_end:\ns_endpgm')
        return k
```

```python
from common import *
from k1 import acc, S_WS, S_WAVE, S_RG, S_CG, S_P
import math
VC = 208
VT = 212
VS = 228
VA = 244
SB = 60
LOG2E = 1.4426950408889634
C1 = -2.0 * math.sqrt(2.0 / math.pi) * LOG2E
C2 = C1 * 0.044715

def pairs(regs4):
    return [r + o for r in regs4 for o in (0, 2)]

def gelu(k, regs4, tset, stats_rb=None, first=False):
    P = pairs(regs4); T = [VT + tset * 8 + 2 * i for i in range(len(P))]
    for p, t in zip(P, T): k(f'v_pk_mul_f32 v[{t}:{t+1}], v[{p}:{p+1}], v[{p}:{p+1}]')
    for p, t in zip(P, T): k(f'v_pk_fma_f32 v[{t}:{t+1}], v[{t}:{t+1}], v[{VC}:{VC+1}], v[{VC}:{VC+1}] op_sel:[0,0,1] op_sel_hi:[1,0,1]')
    for p, t in zip(P, T): k(f'v_pk_mul_f32 v[{t}:{t+1}], v[{t}:{t+1}], v[{p}:{p+1}]')
    for t in T: k(f'v_exp_f32 v{t}, v{t}\nv_exp_f32 v{t+1}, v{t+1}')
    for t in T: k(f'v_pk_add_f32 v[{t}:{t+1}], v[{t}:{t+1}], 1.0 op_sel_hi:[1,0]')
    for t in T: k(f'v_rcp_f32 v{t}, v{t}\nv_rcp_f32 v{t+1}, v{t+1}')
    for p, t in zip(P, T): k(f'v_pk_mul_f32 v[{p}:{p+1}], v[{p}:{p+1}], v[{t}:{t+1}]')
    if stats_rb is not None:
        s = VS + 2 * stats_rb; q = VS + 8 + 2 * stats_rb
        for n, p in enumerate(P):
            if first and n == 0:
                k(f'v_pk_mul_f32 v[{q}:{q+1}], v[{p}:{p+1}], v[{p}:{p+1}]')
            elif first and n == 1:
                k(f'v_pk_add_f32 v[{s}:{s+1}], v[{P[0]}:{P[0]+1}], v[{p}:{p+1}]')
                k(f'v_pk_fma_f32 v[{q}:{q+1}], v[{p}:{p+1}], v[{p}:{p+1}], v[{q}:{q+1}]')
            else:
                k(f'v_pk_add_f32 v[{s}:{s+1}], v[{s}:{s+1}], v[{p}:{p+1}]')
                k(f'v_pk_fma_f32 v[{q}:{q+1}], v[{p}:{p+1}], v[{p}:{p+1}], v[{q}:{q+1}]')

def phi(k, regs4, tset):
    P = pairs(regs4); T = [VT + tset * 8 + 2 * i for i in range(len(P))]
    c = VC + 2
    for p, t in zip(P, T): k(f'v_pk_mul_f32 v[{t}:{t+1}], v[{p}:{p+1}], v[{c}:{c+1}] op_sel_hi:[1,0]')
    for p in P: k(f'v_pk_add_f32 v[{p}:{p+1}], v[{p}:{p+1}], 1.0 op_sel_hi:[1,0]')
    for t in T: k(f'v_exp_f32 v{t}, v{t} clamp\nv_exp_f32 v{t+1}, v{t+1} clamp')
    for p, t in zip(P, T): k(f'v_max_f32 v{p}, v{p}, v{t}\nv_max_f32 v{p+1}, v{p+1}, v{t+1}')
    for p in P: k(f'v_pk_add_f32 v[{p}:{p+1}], v[{p}:{p+1}], v[{c}:{c+1}] op_sel:[0,1] op_sel_hi:[1,1]')

def pack(k, a, b=None):
    k(f'v_cvt_pk_bf16_f32 v{a}, v{a}, v{a+1}\nv_cvt_pk_bf16_f32 v{a+1}, v{a+2}, v{a+3}')
    if b is not None:
        k(f'v_cvt_pk_bf16_f32 v{a+2}, v{b}, v{b+1}\nv_cvt_pk_bf16_f32 v{a+3}, v{b+2}, v{b+3}')

def win_groups(typ):
    if typ == 'E': return [(8, 9, 0, None), (10, 11, 1024, None), (12, None, 2048, 0)]
    return [(5, 6, 0, None), (7, 8, 1024, None), (9, 10, 2048, None), (11, 12, 3072, None), (4, None, 0, 1)]

def bases(k, s0, ws, ncp, cp_sgpr):
    k(f'''s_lshl_b32 s34, s{S_RG}, 4
    s_lshl_b32 s35, s{S_WAVE}, 2
    s_add_u32 s34, s34, s35
    s_mul_i32 s34, s34, {ncp}
    s_add_u32 s34, s34, s{cp_sgpr}
    s_lshl_b32 s34, s34, 10
    s_add_u32 s{s0}, s34, {ws}''')
    for rb in range(1, 4): k(f's_add_u32 s{s0+rb}, s{s0}, {rb*ncp*1024}')

def qpart(k):
    k(f's_lshl_b32 s36, s{S_P}, 1')
    bases(k, SB + 4, WS_PQ, 32, 36)
    n = 0
    for hh in range(2):
        for rb in range(4):
            a, b = acc(2 * hh, rb), acc(2 * hh + 1, rb)
            phi(k, [a, b], n & 1); n += 1
            pack(k, a, b)
            k(f'buffer_store_dwordx4 v[{a}:{a+3}], v{VA}, s[{S_WS}:{S_WS+3}], s{SB+4+rb} offen offset:{hh*1024}')

def kvpart(K, k):
    n = 0
    for j in range(4):
        for ks in range(2):
            a, b = acc(j, 2 * ks), acc(j, 2 * ks + 1)
            phi(k, [a, b], n & 1); n += 1
            pack(k, a, b)
    for j in range(4, 8):
        for ks in range(2): pack(k, acc(j, 2 * ks), acc(j, 2 * ks + 1))
    free = [acc(j, rb) for j in range(8) for rb in (1, 3)]
    ones = free[12]
    for r in range(4): k(f'v_mov_b32 v{ones+r}, 0x3f803f80')
    k('s_nop 1')
    blocks = []
    for hh in range(2):
        for db in range(2):
            for eb in range(3): blocks.append((hh, db, eb))
    for ks in range(2):
        for n, (hh, db, eb) in enumerate(blocks):
            d = free[n]; a = acc(2 * hh + db, 2 * ks)
            b = acc(4 + 2 * hh + eb, 2 * ks) if eb < 2 else ones
            c = f'v[{d}:{d+3}]' if ks else '0'
            k(f'v_mfma_f32_16x16x32_bf16 v[{d}:{d+3}], v[{a}:{a+3}], v[{b}:{b+3}], {c}')
    k(f'''s_mul_i32 s34, s{S_WAVE}, 12288
    s_add_u32 s34, s34, {K.L_KV}
    v_add_u32 v{VA+4}, s34, v{VA}
    s_mul_i32 s34, s{S_WAVE}, 3072
    s_add_u32 s34, s34, {K.L_KV}
    v_add_u32 v{VA+5}, s34, v{VA}
    s_nop 1''')
    for n in range(12):
        k(f'ds_write_b128 v{VA+4}, v[{free[n]}:{free[n]+3}] offset:{n*1024}')
    k('s_waitcnt lgkmcnt(0)\ns_barrier')
    tmp = [acc(j, 0) for j in range(8)] + [acc(j, 2) for j in range(4)]
    for n in range(3):
        for w in range(4):
            t = tmp[n * 4 + w]
            k(f'ds_read_b128 v[{t}:{t+3}], v{VA+5} offset:{w*12288 + n*1024}')
    k(f'''s_lshl_b32 s34, s{S_RG}, 5
    s_lshl_b32 s35, s{S_P}, 1
    s_add_u32 s34, s34, s35
    s_mul_i32 s34, s34, 6
    s_mul_i32 s35, s{S_WAVE}, 3
    s_add_u32 s34, s34, s35
    s_lshl_b32 s34, s34, 10
    s_add_u32 s34, s34, {WS_KVP}''')
    for n in range(3):
        t = tmp[n * 4:n * 4 + 4]
        k(f's_waitcnt lgkmcnt({8 - 4*n})')
        for o in (0, 2):
            k(f'v_pk_add_f32 v[{t[0]+o}:{t[0]+o+1}], v[{t[0]+o}:{t[0]+o+1}], v[{t[1]+o}:{t[1]+o+1}]')
            k(f'v_pk_add_f32 v[{t[2]+o}:{t[2]+o+1}], v[{t[2]+o}:{t[2]+o+1}], v[{t[3]+o}:{t[3]+o+1}]')
        for o in (0, 2):
            k(f'v_pk_add_f32 v[{t[0]+o}:{t[0]+o+1}], v[{t[0]+o}:{t[0]+o+1}], v[{t[2]+o}:{t[2]+o+1}]')
        k(f'buffer_store_dwordx4 v[{t[0]}:{t[0]+3}], v{VA}, s[{S_WS}:{S_WS+3}], s34 offen offset:{n*1024}')

def epilogue(K, typ):
    k = K.k; name = K.name
    G = win_groups(typ)
    k(f'''
    v_mov_b32 v{VC}, {f2u(C2):#x}
    v_mov_b32 v{VC+1}, {f2u(C1):#x}
    v_mov_b32 v{VC+2}, {f2u(LOG2E):#x}
    v_mov_b32 v{VC+3}, {f2u(1e-6):#x}
    v_lshlrev_b32 v{VA}, 4, v255
    s_and_b32 s36, s{S_P}, 7
    s_mul_i32 s36, s36, 7
    ''')
    if typ == 'O': k('s_add_u32 s36, s36, 2')
    k(f's_cmp_ge_u32 s{S_P}, 8\ns_cbranch_scc1 {name}_{typ}_z2')
    bases(k, SB, WS_Z1, 56, 36)
    k(f'v_add_u32 v{VA+1}, {1024 if typ == "O" else 0}, v{VA}')
    n = 0
    for (ja, jb, off, hb) in G:
        if jb is not None:
            for rb in range(4):
                a, b = acc(ja, rb), acc(jb, rb)
                gelu(k, [a, b], n & 1); n += 1
                pack(k, a, b)
                k(f'buffer_store_dwordx4 v[{a}:{a+3}], v{VA+1}, s[{S_WS}:{S_WS+3}], s{SB+rb} offen offset:{off}')
        else:
            for rb in (0, 2):
                a, b = acc(ja, rb), acc(ja, rb + 1)
                gelu(k, [a, b], n & 1); n += 1
                pack(k, a); pack(k, b)
                k(f'buffer_store_dwordx2 v[{a}:{a+1}], v{VA}, s[{S_WS}:{S_WS+3}], s{SB+rb} offen offset:{off + 8*hb}')
                k(f'buffer_store_dwordx2 v[{b}:{b+1}], v{VA}, s[{S_WS}:{S_WS+3}], s{SB+rb+1} offen offset:{off + 8*hb}')
    stamp(k, K.opt, 3, S_WS, 250)
    if typ == 'O': qpart(k)
    else: kvpart(K, k)
    stamp(k, K.opt, 4, S_WS, 250)
    stamp(k, K.opt, 5, S_WS, 250)
    k(f's_branch {name}_{typ}_done')
    k(f'{name}_{typ}_z2:')
    bases(k, SB, WS_Z2, 56, 36)
    n = 0
    for gi, (ja, jb, off, hb) in enumerate(G):
        for rb in range(4):
            regs = [acc(ja, rb)] + ([acc(jb, rb)] if jb is not None else [])
            gelu(k, regs, n & 1, stats_rb=rb, first=(gi == 0)); n += 1
    S = [VS + 2 * rb for rb in range(4)]; Qs = [VS + 8 + 2 * rb for rb in range(4)]
    for r in S + Qs: k(f'v_add_f32 v{r}, v{r}, v{r+1}')
    k(f'''s_lshl_b32 s34, s{S_RG}, 8
    s_lshl_b32 s35, s{S_WAVE}, 6
    s_add_u32 s34, s34, s35
    s_lshl_b32 s34, s34, 3
    s_add_u32 s37, s34, {WS_ST}
    s_and_b32 s35, s{S_CG}, 15
    s_lshl_b32 s35, s35, 14
    s_add_u32 s38, s37, s35''')
    for X in (S, Qs):
        k(f'v_permlane32_swap_b32 v{X[0]}, v{X[2]}\nv_permlane32_swap_b32 v{X[1]}, v{X[3]}')
    for X in (S, Qs):
        k(f'v_add_f32 v{X[0]}, v{X[0]}, v{X[2]}\nv_add_f32 v{X[1]}, v{X[1]}, v{X[3]}')
    k(f'v_lshlrev_b32 v{VA+3}, 3, v255\ns_nop 0')
    for X in (S, Qs): k(f'v_permlane16_swap_b32 v{X[0]}, v{X[1]}')
    k(f'v_add_f32 v{VS}, v{S[0]}, v{S[1]}\nv_add_f32 v{VS+1}, v{Qs[0]}, v{Qs[1]}')
    k(f'buffer_store_dwordx2 v[{VS}:{VS+1}], v{VA+3}, s[{S_WS}:{S_WS+3}], s38 offen sc1')
    stamp(k, K.opt, 3, S_WS, 250)
    if typ == 'O': qpart(k)
    else: kvpart(K, k)
    stamp(k, K.opt, 4, S_WS, 250)
    t = VT
    k(f'''
    v_bfe_u32 v{t}, v255, 2, 1
    v_lshlrev_b32 v{t}, 9, v{t}
    v_bfe_u32 v{t+1}, v255, 3, 1
    v_lshl_add_u32 v{t}, v{t+1}, 7, v{t}
    v_and_b32 v{t+1}, 3, v255
    v_lshl_add_u32 v{t}, v{t+1}, 5, v{t}
    v_bfe_u32 v{t+1}, v255, 5, 1
    v_lshl_add_u32 v{t}, v{t+1}, 4, v{t}          ; + h*16
    v_bfe_u32 v{t+1}, v255, 4, 1
    v_lshl_add_u32 v{VA+1}, v{t+1}, 8, v{t}
    v_lshl_add_u32 v{VA+2}, v{t+1}, 3, v{t}
    ''')
    if typ == 'O': k(f'v_add_u32 v{VA+1}, 1024, v{VA+1}')
    R = 0
    k(f's_mov_b32 s39, 0x40000\ns_nop 0\n{name}_{typ}_poll:')
    k('s_mov_b32 s35, s37')
    for c in range(16):
        k(f'buffer_load_dwordx2 v[{R+2*c}:{R+2*c+1}], v{VA+3}, s[{S_WS}:{S_WS+3}], s35 offen sc1')
        if c < 15: k('s_add_u32 s35, s35, 16384')
    k('s_waitcnt vmcnt(0)')
    k(f'v_max3_u32 v{t}, v{R}, v{R+1}, v{R+2}')
    for c in range(3, 31, 2): k(f'v_max3_u32 v{t}, v{t}, v{R+c}, v{R+c+1}')
    k(f'''v_max_u32 v{t}, v{t}, v{R+31}
    v_cmp_eq_u32 vcc, -1, v{t}
    s_sub_u32 s39, s39, 1
    s_cbranch_scc1 {name}_{typ}_go
    s_cbranch_vccnz {name}_{typ}_poll
    {name}_{typ}_go:''')
    stamp(k, K.opt, 5, S_WS, 250)
    for st in (8, 4, 2, 1):
        for c in range(st): k(f'v_pk_add_f32 v[{R+2*c}:{R+2*c+1}], v[{R+2*c}:{R+2*c+1}], v[{R+2*(c+st)}:{R+2*(c+st)+1}]')
    ln_finish(k, R, R + 1, 1792, t)
    k(f'''v_mul_f32 v{R}, v{R}, v{R+1}
    v_mov_b32 v{VS}, v{R+1}
    v_mov_b32 v{VS+4}, v{R+1}
    v_sub_f32 v{VS+1}, 0, v{R}
    v_sub_f32 v{VS+5}, 0, v{R}
    s_nop 1
    v_permlane32_swap_b32 v{VS}, v{VS+4}
    v_permlane32_swap_b32 v{VS+1}, v{VS+5}
    v_mov_b32 v{VS+2}, v{VS}
    v_mov_b32 v{VS+3}, v{VS+1}
    v_mov_b32 v{VS+6}, v{VS+4}
    v_mov_b32 v{VS+7}, v{VS+5}
    s_nop 0
    v_permlane16_swap_b32 v{VS}, v{VS+2}
    v_permlane16_swap_b32 v{VS+1}, v{VS+3}
    v_permlane16_swap_b32 v{VS+4}, v{VS+6}
    v_permlane16_swap_b32 v{VS+5}, v{VS+7}
    ''')
    for (ja, jb, off, hb) in G:
        for rb in range(4):
            regs = [acc(ja, rb)] + ([acc(jb, rb)] if jb is not None else [])
            c = VS + 2 * rb
            for p in pairs(regs):
                k(f'v_pk_fma_f32 v[{p}:{p+1}], v[{p}:{p+1}], v[{c}:{c+1}], v[{c}:{c+1}] op_sel:[0,0,1] op_sel_hi:[1,0,1]')
        for rb in range(4):
            pack(k, acc(ja, rb), acc(jb, rb) if jb is not None else None)
        for rb in range(4):
            a = acc(ja, rb)
            if jb is not None:
                if rb == 0: k('s_nop 0')
                k(f'v_permlane16_swap_b32 v{a}, v{a+2}\nv_permlane16_swap_b32 v{a+1}, v{a+3}')
                k(f'buffer_store_dwordx4 v[{a}:{a+3}], v{VA+1}, s[{S_WS}:{S_WS+3}], s{SB+rb} offen offset:{off}')
            else:
                k(f'buffer_store_dwordx2 v[{a}:{a+1}], v{VA+2}, s[{S_WS}:{S_WS+3}], s{SB+rb} offen offset:{off + 256*hb}')
    k(f'{name}_{typ}_done:')
```

```python
from core128 import *
S_WS, S_SP, S_B = 4, 8, 12
S_WAVE, S_AO, S_BO, S_TB, S_FB, S_IT = 21, 22, 23, 24, 25, 26
V_AD, V_BD, V_AR, V_BR = V0, V0 + 1, V0 + 5, V0 + 7
V_Z = 144
V_BIAS = 176
V_L16 = 180; V_T = 182; V_LANE = 191

class G3(Core):
    def a_dma(self, st, i): return f'buffer_load_dwordx4 v{V_AD}, s[{S_WS}:{S_WS+3}], s{S_AO} offen offset:{i*1024} lds'
    def b_dma(self, st, i): return f'buffer_load_dwordx4 v{V_BD+i}, s[{S_SP}:{S_SP+3}], s{S_BO} offen offset:{i*1024} lds'
    def inc_a(self): return [('i', f's_add_u32 s{S_AO}, s{S_AO}, {4*57344}')]
    def inc_b(self): return [('i', f's_add_u32 s{S_BO}, s{S_BO}, 128')]
    def a_read(self, st, kk, j):
        r = FA(kk, j); h = (st >> 1) & 1
        return [f'ds_read_b64_tr_b16 v[{r+2*t}:{r+2*t+1}], v{V_AR+h} offset:{(st & 1)*STG + A_OFF + kk*8192 + (j >> 1)*1024 + (2*t + (j & 1))*256}' for t in range(2)]
    def b_read(self, st, kk, j):
        r = FB(kk, j); h = (st >> 1) & 1
        return f'ds_read_b128 v[{r}:{r+3}], v{V_BR + 2*h + kk} offset:{(st & 1)*STG + B_OFF + j*2048}'

def side(k, name, opt):
    L = V_L16
    k(f'''
    s_mul_i32 s30, s24, 6144
    s_add_u32 s30, s30, {WS_KVP}
    ''')
    for half in range(2):
        for r in range(4):
            for b in range(6):
                d = 24 + (r * 6 + b) * 4
                k(f'buffer_load_dwordx4 v[{d}:{d+3}], v{L}, s[{S_WS}:{S_WS+3}], s30 offen offset:{(b & 3)*1024}' if b < 4 else
                  f'buffer_load_dwordx4 v[{d}:{d+3}], v{L+1}, s[{S_WS}:{S_WS+3}], s30 offen offset:{(b & 3)*1024}')
            k(f's_add_u32 s30, s30, {32*6144}')
        for r in range(4):
            k(f's_waitcnt vmcnt({18 - 6*r})')
            for p in range(0, 24, 2):
                d = 24 + r * 24 + p
                if half == 0 and r == 0: k(f'v_mov_b32 v{p}, v{d}\nv_mov_b32 v{p+1}, v{d+1}')
                else: k(f'v_pk_add_f32 v[{p}:{p+1}], v[{p}:{p+1}], v[{d}:{d+1}]')
    for eb in range(3):
        a, b = eb * 4, 12 + eb * 4
        k(f'''v_cvt_pk_bf16_f32 v{a}, v{a}, v{a+1}
        v_cvt_pk_bf16_f32 v{a+1}, v{a+2}, v{a+3}
        v_cvt_pk_bf16_f32 v{a+2}, v{b}, v{b+1}
        v_cvt_pk_bf16_f32 v{a+3}, v{b+2}, v{b+3}''')
    k(f'''
    s_lshl_b32 s30, s{S_WAVE}, 20
    s_lshl_b32 s31, s24, 10
    s_add_u32 s30, s30, s31
    s_add_u32 s31, s30, {WS_O}
    s_add_u32 s30, s30, {WS_PQ}
    ''')
    NB = 8
    def P(bt, n): return 16 + (bt & 1) * 32 + n * 4
    def loads(bt):
        for n in range(NB):
            k(f'buffer_load_dwordx4 v[{P(bt,n)}:{P(bt,n)+3}], v{L}, s[{S_WS}:{S_WS+3}], s30 offen\ns_add_u32 s30, s30, 32768')
    loads(0)
    for bt in range(4):
        if bt < 3: loads(bt + 1)
        nst = 0 if bt == 0 else NB
        k(f's_waitcnt vmcnt({nst + (NB if bt < 3 else 0)})')
        for n in range(NB):
            d = 80 + n * 12; p = P(bt, n)
            for eb in range(3):
                k(f'v_mfma_f32_16x16x32_bf16 v[{d+4*eb}:{d+4*eb+3}], v[{4*eb}:{4*eb+3}], v[{p}:{p+3}], 0')
        k('s_nop 7')
        for n in range(NB): k(f'v_add_f32 v{80+n*12+8}, {f2u(1e-6):#x}, v{80+n*12+8}')
        for n in range(NB): k(f'v_rcp_f32 v{80+n*12+8}, v{80+n*12+8}')
        for n in range(NB):
            d = 80 + n * 12
            for o in range(0, 8, 2):
                k(f'v_pk_mul_f32 v[{d+o}:{d+o+1}], v[{d+o}:{d+o+1}], v[{d+8}:{d+9}] op_sel_hi:[1,0]')
            for o in range(4): k(f'v_cvt_pk_bf16_f32 v{d+o}, v{d+2*o}, v{d+2*o+1}')
            k(f'buffer_store_dwordx4 v[{d}:{d+3}], v{L}, s[{S_WS}:{S_WS+3}], s31 offen\ns_add_u32 s31, s31, 32768')
        k('s_nop 1')

def make_k2(name, opt):
    k = Kernel(name, 256, 256, 4 * STG, vgpr=192, sgpr=96)
    g = G3(); t = V_T
    if opt.get('st2'): g.st2 = 190
    k(f'''
    s_cmp_ge_u32 s2, 256
    s_cbranch_scc1 {name}_end
    s_load_dwordx2 s[{S_WS}:{S_WS+1}], s[0:1], 80
    s_load_dwordx2 s[{S_SP}:{S_SP+1}], s[0:1], 40
    s_load_dwordx2 s[{S_B}:{S_B+1}], s[0:1], 48
    v_lshrrev_b32 v1, 6, v0
    v_and_b32 v{V_LANE}, 63, v0
    ''')
    srd(k, S_WS, 0, 0x10000000)
    k(f'v_readfirstlane_b32 s{S_WAVE}, v1')
    srd(k, S_SP, 0, 8 << 20); srd(k, S_B, 0, 4096)
    k(f'''
    v_lshlrev_b32 v{V_L16}, 4, v{V_LANE}
    v_add_u32 v{V_L16+1}, 4096, v{V_L16}
    s_lshr_b32 s30, s2, 3                   ; idx
    s_and_b32 s31, s2, 7                    ; xcd
    s_cmp_lt_u32 s30, 28
    s_cbranch_scc1 {name}_main
    s_lshl_b32 s31, s31, 2
    s_add_u32 s24, s31, s30
    s_sub_u32 s24, s24, 28
    s_waitcnt lgkmcnt(0)
    ''')
    stamp(k, opt, 0, S_WS, t)
    if opt.get('stamp'): k('s_waitcnt vmcnt(0)')
    side(k, name, opt)
    stamp(k, opt, 3, S_WS, t)
    k(f'''s_endpgm
    {name}_main:
    s_and_b32 s32, s31, 3
    s_lshl_b32 s32, s32, 2
    s_and_b32 s33, s30, 3
    s_add_u32 s{S_TB}, s32, s33
    s_lshr_b32 s32, s31, 2
    s_mul_i32 s32, s32, 7
    s_lshr_b32 s33, s30, 2
    s_add_u32 s{S_FB}, s32, s33
    s_lshl_b32 s{g.S_LB}, s{S_WAVE}, 12
    s_mul_i32 s32, s{S_WAVE}, 57344
    s_lshl_b32 s33, s{S_FB}, 12
    s_add_u32 s32, s32, s33
    v_add_u32 v{V_AD}, s32, v{V_L16}
    s_mov_b32 s{S_AO}, {WS_Z2}
    s_mov_b32 s{S_BO}, 0
    ; B dma: (t0 + 32w + 8i + (l>>3))*4096 + ((l&7)^(l>>3))*16 - i*1024
    v_lshrrev_b32 v{t}, 3, v{V_LANE}
    v_and_b32 v{t+1}, 7, v{V_LANE}
    v_xor_b32 v{t+1}, v{t}, v{t+1}
    v_lshlrev_b32 v{t+1}, 4, v{t+1}
    v_lshl_add_u32 v{t+1}, v{t}, 12, v{t+1}
    s_lshl_b32 s32, s{S_TB}, 19
    s_lshl_b32 s33, s{S_WAVE}, 17
    s_add_u32 s32, s32, s33
    v_add_u32 v{V_BD}, s32, v{t+1}
    v_add_u32 v{V_BD+1}, {1*31744}, v{V_BD}
    v_add_u32 v{V_BD+2}, {2*31744}, v{V_BD}
    v_add_u32 v{V_BD+3}, {3*31744}, v{V_BD}
    s_waitcnt lgkmcnt(0)
    ''')
    stamp(k, opt, 0, S_WS, t)
    if opt.get('stamp'): k('s_waitcnt vmcnt(0)')
    mid = [('i', f'''
    v_lshrrev_b32 v{t}, 5, v{V_LANE}
    v_lshlrev_b32 v{t}, 12, v{t}
    v_bfe_u32 v{t+1}, v{V_LANE}, 2, 3
    v_lshl_add_u32 v{t}, v{t+1}, 5, v{t}
    v_and_b32 v{t+1}, 3, v{V_LANE}
    v_lshl_add_u32 v{t}, v{t+1}, 3, v{t}
    s_lshr_b32 s32, s{S_WAVE}, 1
    s_lshl_b32 s32, s32, 11
    v_add_u32 v{V_AR}, s32, v{t}
    v_add_u32 v{V_AR+1}, 0x10000, v{V_AR}
    v_and_b32 v{t}, 15, v{V_LANE}
    v_lshrrev_b32 v{t+1}, 4, v{V_LANE}
    v_and_b32 v{t+2}, 7, v{V_LANE}
    v_xor_b32 v{t+1}, v{t+1}, v{t+2}
    v_lshlrev_b32 v{t+1}, 4, v{t+1}
    v_lshl_add_u32 v{t+1}, v{t}, 7, v{t+1}
    s_and_b32 s33, s{S_WAVE}, 1
    s_lshl_b32 s32, s33, 13
    v_add_u32 v{V_BR}, s32, v{t+1}
    v_xor_b32 v{V_BR+1}, 64, v{V_BR}
    v_add_u32 v{V_BR+2}, 0x10000, v{V_BR}
    v_add_u32 v{V_BR+3}, 0x10000, v{V_BR+1}
    v_lshlrev_b32 v{t+3}, 1, v{t}
    s_lshl_b32 s32, s{S_TB}, 8
    s_lshl_b32 s34, s33, 7
    s_add_u32 s40, s32, s34
    s_lshl_b32 s32, s{S_TB}, 3
    s_lshl_b32 s34, s33, 2
    s_add_u32 s32, s32, s34
    s_mul_i32 s32, s32, 56
    s_lshl_b32 s34, s{S_FB}, 2
    s_add_u32 s32, s32, s34
    s_and_b32 s34, s{S_WAVE}, 2
    s_add_u32 s32, s32, s34
    s_lshl_b32 s32, s32, 10
    s_add_u32 s44, s32, {WS_Z1}
    s_add_u32 s45, s44, 57344
    s_add_u32 s46, s45, 57344
    s_add_u32 s47, s46, 57344
    ''')]
    ex = {}
    zl = []
    for jb in range(4):
        zl.append(('vm', f'buffer_load_ushort v{V_BIAS+jb}, v{t+3}, s[{S_B}:{S_B+3}], s40 offen offset:{jb*32}', 'Z'))
    for jb in range(4):
        for P in range(2):
            z = V_Z + (jb * 2 + P) * 4
            zl.append(('vm', f'buffer_load_dwordx4 v[{z}:{z+3}], v{V_L16}, s[{S_WS}:{S_WS+3}], s{44+jb} offen offset:{P*1024}', 'Z'))
    ex[29] = {2 * n + 1: [zl[n]] for n in range(12)}
    q = Q()
    g.run(k, 32, q, mid, ex, S_IT, (lambda: stamp(k, opt, 1, S_WS, t + 4)) if opt.get('stamp') else None)
    stamp(k, opt, 2, S_WS, t + 4)
    g.st2_out(k, opt, S_WS, V_L16)
    for jb in range(4): k(f's_add_u32 s{44+jb}, s{44+jb}, {WS_U - WS_Z1}')
    k('s_waitcnt vmcnt(0)')
    for jb in range(4): k(f'v_lshlrev_b32 v{V_BIAS+jb}, 16, v{V_BIAS+jb}')
    for jb in range(4):
        bp = V_BIAS + (jb & 2); sel = jb & 1
        for P in range(2):
            z = V_Z + (jb * 2 + P) * 4; T = 64 + ((jb * 2 + P) & 1) * 8
            regs = [acc(2 * P, jb), acc(2 * P, jb) + 2, acc(2 * P + 1, jb), acc(2 * P + 1, jb) + 2]
            for n, p in enumerate(regs):
                k(f'v_lshlrev_b32 v{T+2*n}, 16, v{z+n}\nv_and_b32 v{T+2*n+1}, 0xffff0000, v{z+n}')
                k(f'v_pk_add_f32 v[{p}:{p+1}], v[{p}:{p+1}], v[{bp}:{bp+1}] op_sel:[0,{sel}] op_sel_hi:[1,{sel}]')
            for n, p in enumerate(regs):
                k(f'v_pk_mul_f32 v[{p}:{p+1}], v[{p}:{p+1}], v[{T+2*n}:{T+2*n+1}]')
            for n, p in enumerate(regs):
                k(f'v_cvt_pk_bf16_f32 v{z+n}, v{p}, v{p+1}')
            k(f'buffer_store_dwordx4 v[{z}:{z+3}], v{V_L16}, s[{S_WS}:{S_WS+3}], s{44+jb} offen offset:{P*1024}')
    stamp(k, opt, 3, S_WS, t + 4)
    k(f'{name}_end:\ns_endpgm')
    return k
```

```python
from core128 import *
S_WS, S_W, S_X, S_OUT = 4, 8, 12, 16
S_WAVE, S_AO, S_BO, S_TB, S_NB, S_IT = 21, 22, 23, 24, 25, 26
V_AD, V_BD, V_AR, V_BR = V0, V0 + 4, V0 + 6, V0 + 14
V_S = 144; V_X = 176
V_L16 = 208; V_OA = 209; V_FL = 210; V_T = 212; V_LANE = 223
LOG2E = 1.4426950408889634

class G4(Core):
    def a_dma(self, st, i): return f'buffer_load_dwordx4 v{V_AD+i}, s[{S_W}:{S_W+3}], s{S_AO} offen offset:{i*1024} lds'
    def b_dma(self, st, i): return f'buffer_load_dwordx4 v{V_BD+(i >> 1)}, s[{S_WS}:{S_WS+3}], s{S_BO} offen offset:{i*1024} lds'
    def inc_a(self): return [('i', f's_add_u32 s{S_AO}, s{S_AO}, {64*2048}')]
    def inc_b(self): return [('i', f's_add_u32 s{S_BO}, s{S_BO}, 2048')]
    def a_read(self, st, kk, j):
        r = FA(kk, j); h = (st >> 1) & 1
        return [f'ds_read_b64_tr_b16 v[{r+2*t}:{r+2*t+1}], v{V_AR+4*h+j} offset:{(st & 1)*STG + A_OFF + (2*kk + t)*4096}' for t in range(2)]
    def b_read(self, st, kk, j):
        r = FB(kk, j); h = (st >> 1) & 1
        return f'ds_read_b128 v[{r}:{r+3}], v{V_BR+h} offset:{(st & 1)*STG + B_OFF + j*2048 + kk*1024}'

def make_k3(name, opt):
    k = Kernel(name, 256, 256, 4 * STG, vgpr=224, sgpr=96)
    g = G4(); t = V_T
    if opt.get('st2'): g.st2 = 222
    k(f'''
    s_cmp_ge_u32 s2, 256
    s_cbranch_scc1 {name}_end
    s_lshr_b32 s30, s2, 3                   ; idx
    s_and_b32 s31, s2, 7                    ; xcd
    s_and_b32 s27, s30, 1
    s_cmp_eq_u32 s27, 0
    s_cselect_b32 s28, 56, 16
    s_load_dwordx2 s[{S_WS}:{S_WS+1}], s[0:1], 80
    s_load_dwordx2 s[{S_W}:{S_W+1}], s[0:1], s28
    s_load_dwordx2 s[{S_X}:{S_X+1}], s[0:1], 0
    s_load_dwordx2 s[{S_OUT}:{S_OUT+1}], s[0:1], 64
    v_lshrrev_b32 v1, 6, v0
    v_and_b32 v{V_LANE}, 63, v0
    ''')
    srd(k, S_WS, 0, 0x10000000)
    k(f'v_readfirstlane_b32 s{S_WAVE}, v1')
    srd(k, S_X, 0, 4 << 20); srd(k, S_OUT, 0, 4 << 20)
    k(f'''
    s_mov_b32 s32, {1792*2048 + 4096}
    s_cselect_b32 s{S_W+2}, s32, {1024*2048 + 4096}
    s_mov_b32 s{S_W+3}, 0x20000
    s_cselect_b32 s29, 56, 32
    s_mov_b32 s32, {WS_U}
    s_cselect_b32 s{S_BO}, s32, {WS_O}
    s_mov_b32 s{S_AO}, 0
    v_lshlrev_b32 v{V_L16}, 4, v{V_LANE}
    s_lshr_b32 s30, s30, 1
    s_and_b32 s32, s31, 3
    s_lshl_b32 s32, s32, 2
    s_and_b32 s33, s30, 3
    s_add_u32 s{S_TB}, s32, s33
    s_lshr_b32 s32, s31, 2
    s_lshl_b32 s32, s32, 2
    s_lshr_b32 s33, s30, 2
    s_add_u32 s{S_NB}, s32, s33
    s_lshl_b32 s{g.S_LB}, s{S_WAVE}, 12
    s_lshl_b32 s32, s{S_TB}, 3
    s_lshl_b32 s33, s{S_WAVE}, 1
    s_add_u32 s32, s32, s33
    s_lshl_b32 s33, s29, 10
    s_mul_i32 s32, s32, s33
    v_add_u32 v{V_BD}, s32, v{V_L16}
    s_sub_u32 s33, s33, 2048
    v_add_u32 v{V_BD+1}, s33, v{V_BD}
    v_lshrrev_b32 v{t}, 3, v{V_LANE}
    v_bfe_u32 v{t+1}, v{V_LANE}, 4, 2
    v_bfe_u32 v{t+2}, v{V_LANE}, 1, 2
    v_xor_b32 v{t+1}, v{t+1}, v{t+2}
    v_and_b32 v{t+2}, 1, v{V_LANE}
    v_lshlrev_b32 v{t+2}, 4, v{t+2}
    v_lshl_add_u32 v{t+1}, v{t+1}, 5, v{t+2}
    v_lshl_add_u32 v{t+1}, v{t}, 11, v{t+1}
    s_lshl_b32 s32, s{S_WAVE}, 15
    s_lshl_b32 s33, s{S_NB}, 8
    s_add_u32 s32, s32, s33
    s_add_u32 s32, s32, 4096
    v_add_u32 v{V_AD}, s32, v{t+1}
    v_add_u32 v{V_AD+1}, {16384 - 1024}, v{V_AD}
    v_subrev_u32 v{V_AD+2}, {2048 - 128}, v{V_AD}
    v_add_u32 v{V_AD+3}, {16384 + 128 - 3072}, v{V_AD}
    s_waitcnt lgkmcnt(0)
    s_sub_u32 s{S_W}, s{S_W}, 4096
    s_subb_u32 s{S_W+1}, s{S_W+1}, 0
    ''')
    stamp(k, opt, 0, S_WS, t)
    if opt.get('stamp'): k('s_waitcnt vmcnt(0)')
    midtxt = f'''
    v_lshrrev_b32 v{t}, 2, v{V_LANE}
    v_bfe_u32 v{t+1}, v{V_LANE}, 3, 2
    v_and_b32 v{t+2}, 3, v{V_LANE}
    v_lshlrev_b32 v{t+2}, 3, v{t+2}
    v_lshl_add_u32 v{t+2}, v{t}, 7, v{t+2}
    s_lshr_b32 s32, s{S_WAVE}, 1
    s_lshl_b32 s32, s32, 11
    v_add_u32 v{t+2}, s32, v{t+2}
    '''
    for j in range(4):
        midtxt += f'''v_xor_b32 v{t+3}, {j}, v{t+1}
        v_lshl_add_u32 v{V_AR+j}, v{t+3}, 5, v{t+2}
        v_add_u32 v{V_AR+4+j}, 0x10000, v{V_AR+j}
        '''
    midtxt += f'''
    s_and_b32 s33, s{S_WAVE}, 1
    s_lshl_b32 s32, s33, 13
    v_add_u32 v{V_BR}, s32, v{V_L16}
    v_add_u32 v{V_BR+1}, 0x10000, v{V_BR}
    s_lshl_b32 s32, s{S_TB}, 3
    s_add_u32 s32, s32, s{S_NB}
    s_lshl_b32 s32, s32, 2
    s_add_u32 s32, s32, s{S_WAVE}
    s_lshl_b32 s34, s32, 13
    s_add_u32 s40, s34, {WS_S}
    s_add_u32 s41, s40, 4096
    s_lshl_b32 s34, s32, 6
    s_add_u32 s42, s34, {WS_FLAG}
    v_and_b32 v{t}, 15, v{V_LANE}
    v_bfe_u32 v{t+1}, v{V_LANE}, 4, 1
    v_lshlrev_b32 v{t+1}, 5, v{t+1}
    v_lshl_add_u32 v{t}, v{t}, 11, v{t+1}
    v_lshrrev_b32 v{t+1}, 5, v{V_LANE}
    v_lshl_add_u32 v{V_OA}, v{t+1}, 4, v{t}
    s_lshl_b32 s32, s{S_TB}, 18
    s_lshl_b32 s34, s33, 17
    s_add_u32 s32, s32, s34
    s_lshl_b32 s34, s{S_NB}, 8
    s_add_u32 s32, s32, s34
    s_lshr_b32 s34, s{S_WAVE}, 1
    s_lshl_b32 s34, s34, 7
    s_add_u32 s44, s32, s34
    s_add_u32 s45, s44, 32768
    s_add_u32 s46, s45, 32768
    s_add_u32 s47, s46, 32768
    v_mov_b32 v{V_FL+1}, 0
    '''
    mid = [('i', midtxt)]
    k(f's_cmp_eq_u32 s27, 0\ns_cbranch_scc1 {name}_cons')
    q = Q()
    g.run(k, 16, q, mid, {}, S_IT, (lambda: stamp(k, opt, 1, S_WS, t + 4)) if opt.get('stamp') else None)
    stamp(k, opt, 2, S_WS, t + 4)
    g.st2_out(k, opt, S_WS, V_L16)
    k('s_nop 7')
    for jb in range(4):
        for P in range(2):
            a, b = acc(2 * P, jb), acc(2 * P + 1, jb)
            k(f'''v_cvt_pk_bf16_f32 v{a}, v{a}, v{a+1}
            v_cvt_pk_bf16_f32 v{a+1}, v{a+2}, v{a+3}
            v_cvt_pk_bf16_f32 v{a+2}, v{b}, v{b+1}
            v_cvt_pk_bf16_f32 v{a+3}, v{b+2}, v{b+3}''')
        k('s_nop 1')
        for P in range(2):
            a = acc(2 * P, jb); n = jb * 2 + P
            k(f'v_permlane16_swap_b32 v{a}, v{a+2}\nv_permlane16_swap_b32 v{a+1}, v{a+3}')
            k(f'buffer_store_dwordx4 v[{a}:{a+3}], v{V_L16}, s[{S_WS}:{S_WS+3}], s{40 + (n >> 2)} offen offset:{(n & 3)*1024} sc1')
    k(f'''v_mov_b32 v{V_FL}, 1
    s_waitcnt vmcnt(0)
    s_mov_b64 exec, 1
    buffer_store_dword v{V_FL}, v{V_FL+1}, s[{S_WS}:{S_WS+3}], s42 offen sc1
    s_mov_b64 exec, -1''')
    stamp(k, opt, 3, S_WS, t + 4)
    k(f's_endpgm\n{name}_cons:')
    q = Q()
    fl = f'buffer_load_dword v{V_FL}, v{V_FL+1}, s[{S_WS}:{S_WS+3}], s42 offen sc1'
    chk = [('wv', 'F'), ('i', f'''v_readfirstlane_b32 s35, v{V_FL}
    s_mov_b32 s36, 0x40000
    s_cmp_lg_u32 s35, 0
    s_cbranch_scc1 {name}_got
    {name}_spin:
    {fl}
    s_waitcnt vmcnt(0)
    v_readfirstlane_b32 s35, v{V_FL}
    s_sub_u32 s36, s36, 1
    s_cbranch_scc1 {name}_got
    s_cmp_eq_u32 s35, 0
    s_cbranch_scc1 {name}_spin
    {name}_got:''')]
    ex = {23: {3: [('vm', fl, 'F')]}, 25: {15: chk}}
    sl = []; xl = []
    for n in range(8):
        sl.append(('vm', f'buffer_load_dwordx4 v[{V_S+4*n}:{V_S+4*n+3}], v{V_L16}, s[{S_WS}:{S_WS+3}], s{40 + (n >> 2)} offen offset:{(n & 3)*1024} sc1', 'S'))
        xl.append(('vm', f'buffer_load_dwordx4 v[{V_X+4*n}:{V_X+4*n+3}], v{V_OA}, s[{S_X}:{S_X+3}], s{44 + (n >> 1)} offen offset:{(n & 1)*64}', 'S'))
    for n in range(8):
        ex[25][19 + n] = [xl[n]]
    ex[26] = {2 * n + 1: [sl[n]] for n in range(8)}
    g.run(k, 28, q, mid, ex, S_IT, (lambda: stamp(k, opt, 1, S_WS, t + 4)) if opt.get('stamp') else None)
    stamp(k, opt, 2, S_WS, t + 4)
    g.st2_out(k, opt, S_WS, V_L16)
    k(f'v_mov_b32 v{t}, {f2u(-LOG2E):#x}\ns_waitcnt vmcnt(0)\ns_nop 7')
    for jb in range(4):
        for P in range(2):
            n = jb * 2 + P; a, b = acc(2 * P, jb), acc(2 * P + 1, jb)
            T = 64 + (n & 1) * 24; U = T + 8; W = T + 16
            for r in range(4): k(f'v_permlane16_swap_b32 v{a+r}, v{b+r}')
            H = [a, a + 2, b, b + 2]
            for i, p in enumerate(H): k(f'v_pk_mul_f32 v[{T+2*i}:{T+2*i+1}], v[{p}:{p+1}], v[{t}:{t+1}] op_sel_hi:[1,0]')
            for i in range(8): k(f'v_exp_f32 v{T+i}, v{T+i}')
            for i in range(4):
                k(f'v_lshlrev_b32 v{U+2*i}, 16, v{V_S+4*n+i}\nv_and_b32 v{U+2*i+1}, 0xffff0000, v{V_S+4*n+i}')
                k(f'v_pk_add_f32 v[{T+2*i}:{T+2*i+1}], v[{T+2*i}:{T+2*i+1}], 1.0 op_sel_hi:[1,0]')
            for i in range(8): k(f'v_rcp_f32 v{T+i}, v{T+i}')
            for i, p in enumerate(H):
                k(f'v_lshlrev_b32 v{W+2*i}, 16, v{V_X+4*n+i}\nv_and_b32 v{W+2*i+1}, 0xffff0000, v{V_X+4*n+i}')
                k(f'v_pk_mul_f32 v[{p}:{p+1}], v[{p}:{p+1}], v[{T+2*i}:{T+2*i+1}]')
            for i, p in enumerate(H):
                k(f'v_pk_fma_f32 v[{p}:{p+1}], v[{p}:{p+1}], v[{U+2*i}:{U+2*i+1}], v[{W+2*i}:{W+2*i+1}]')
            for i, p in enumerate(H): k(f'v_cvt_pk_bf16_f32 v{V_X+4*n+i}, v{p}, v{p+1}')
            k(f'buffer_store_dwordx4 v[{V_X+4*n}:{V_X+4*n+3}], v{V_OA}, s[{S_OUT}:{S_OUT+3}], s{44+jb} offen offset:{P*64}')
    stamp(k, opt, 3, S_WS, t + 4)
    k(f'{name}_end:\ns_endpgm')
    return k
```

```python
import sys, json
from common import *
from k0 import make_k0
from k1 import K1
from k2 import make_k2
from k3 import make_k3
def gen(opt):
    st = opt.get('stamp')
    o = lambda i: dict(opt, stamp_slot=i)
    ks = [make_k0('k0_kernel', o(0)), K1('k1_kernel', o(1)).build(), make_k2('k2_kernel', o(2)), make_k3('k3_kernel', o(3))]
    txt = build(ks)
    if opt.get('stsc'):
        import re
        txt = '\n'.join((l + ' ' + opt['stsc']) if (l.strip().startswith('buffer_store') and 'sc1' not in l and ', off,' not in l) else l for l in txt.split('\n'))
    return txt
if __name__ == '__main__':
    out = sys.argv[1]
    opt = eval(sys.argv[2]) if len(sys.argv) > 2 else {}
    open(out, 'w').write(gen(opt))
```

```python
import sys
from gen import *
def mk(a, b, K=2):
    k = Kernel('m_kernel', 1, 256, 64, vgpr=32, sgpr=40)
    k('s_cmp_ge_u32 s2, 1\ns_cbranch_scc1 m_end\ns_load_dwordx2 s[4:5], s[0:1], 80')
    srd(k, 4, 0, 0x10000000)
    k('v_lshlrev_b32 v1, 6, v0\nv_mov_b32 v4, 0\ns_waitcnt lgkmcnt(0)')
    if a is not None:
        for n, (sl, idx, mm) in enumerate((a, b)):
            k(f's_mov_b32 s10, {WS_RES + sl * 16384 + idx * 8}\nbuffer_load_dword v{2+n}, v1, s[4:7], s10 offen')
        k('s_waitcnt vmcnt(0)\nds_write_b64 v4, v[2:3]\ns_waitcnt lgkmcnt(0)\ns_barrier')
        for n, (sl, idx, mm) in enumerate((a, b)):
            k(f'ds_{mm}_u32 v4, v{2+n} offset:{4*n}')
        k('s_waitcnt lgkmcnt(0)\ns_barrier\nds_read_b64 v[2:3], v4\ns_waitcnt lgkmcnt(0)\nv_readfirstlane_b32 s12, v2\nv_readfirstlane_b32 s13, v3')
        k(f's_sub_u32 s12, s13, s12\ns_min_u32 s12, s12, 15000\ns_mul_i32 s12, s12, {K}')
        k('s_memrealtime s[14:15]\ns_waitcnt lgkmcnt(0)\nm_spin:\ns_memrealtime s[16:17]\ns_waitcnt lgkmcnt(0)\ns_sub_u32 s18, s16, s14\ns_cmp_lt_u32 s18, s12\ns_cbranch_scc1 m_spin')
    k('m_end:\ns_endpgm')
    return k
def genm(opt, a, b):
    o = lambda i: dict(opt, stamp_slot=i)
    ks = [make_k0('k0_kernel', o(0)), K1('k1_kernel', o(1)).build(), make_k2('k2_kernel', o(2)), make_k3('k3_kernel', o(3)), mk(a, b)]
    return build(ks)
opt = dict(prefetch=1, stamp=1)
L = [(None, None), ((0, 0, 'min'), (3, 3, 'max')), ((0, 0, 'min'), (1, 0, 'min')), ((1, 0, 'min'), (1, 6, 'max')), ((1, 6, 'max'), (2, 3, 'max')), ((2, 3, 'max'), (3, 3, 'max'))]
for i, (a, b) in enumerate(L): open(f'm{i}.s', 'w').write(genm(opt, a, b))
```

```python
from common import *

def acc(j, rb): return (j * 4 + rb) * 4
V_XD = 208
V_CA = [242, 243, 244, 245, 220, 221]
V_XB, V_XR = 238, 240
V_RS = 236
A_CF, A_CS, A_ONE, A_CX = 84, 96, 112, 116
V_CX = 234
V_CL = 248
WS_CX = WS_ST + 0x90000
S_DBG, S_XW, S_XR, S_XBEG, S_XEND, S_RSO, S_CNT = 44, 48, 49, 50, 51, 52, 53
WS_RS = WS_ST + 0x80000
V_WD = 216
V_PR = 222
V_WR = 226
V_PR2, V_WR2 = 234, 238
V_T = 246
A_W = 0
A_X = 52
L_WS = 13312
S_X, S_WQ, S_WW, S_WS = 4, 8, 12, 16
S_XO, S_QO, S_WO = 20, 21, 22
S_WB = 24
S_WAVE, S_RG, S_CG, S_P, S_IT = 29, 30, 31, 32, 33
S_DB = 40
NSUB = 32

class K1:
    def __init__(self, name, opt):
        self.name = name; self.opt = opt
        self.RD = RD = opt.get('RD', 4)
        self.L_DUM = RD * L_WS
        self.L_KV = self.L_X = self.L_DUM + 1024
        self.KVS = 24576
        self.L_CS = self.L_X + 4 * 24576
        self.L_RS = self.L_CS + 2048
        lds = self.L_RS + 2048
        assert RD == 4
        self.k = Kernel(name, 256, 256, lds, vgpr=256 + 120, sgpr=96, accum=256)
    def xf(self, u, rb): return A_X + (u & 1) * 16 + rb * 4
    def wf(self, j): return A_W + j * 4
    def mfma(self, typ, j, rb, u):
        d = acc(j, rb); x = self.xf(u, rb); w = self.wf(j)
        a, b = (x, w) if (typ == 'E' and j < 8) else (w, x)
        return ('i', f'v_mfma_f32_16x16x32_bf16 v[{d}:{d+3}], a[{a}:{a+3}], a[{b}:{b+3}], v[{d}:{d+3}]')
    def wread(self, typ, u, j):
        slot = u % self.RD
        hi = slot >= 4
        base = (slot & 3) * L_WS
        npan = 8 if typ == 'E' else 4
        U = 13 - npan
        ops = []
        for t in range(2):
            r = self.wf(j) + 2 * t
            if j < npan:
                off = base + (j >> 2) * 4096 + 512 * t; v = (V_PR2 if hi else V_PR) + (j & 3)
            else:
                c = 4 * U * t + (j - npan)
                off = base + npan * 1024 + 256 * (c >> 3); v = (V_WR2 if hi else V_WR) + (c & 7)
            ops.append(('lds', f'ds_read_b64_tr_b16 a[{r}:{r+1}], v{v} offset:{off}', ('W', u, j)))
        return ops
    def wdma(self, typ, u, slot):
        ring = (u % self.RD) * L_WS
        if typ == 'E':
            lo, sr, so = [(0, S_WQ, S_QO), (4096, S_WQ, S_QO), (8192, S_WW, S_WO), (None, S_WW, S_WO)][slot]
        else:
            lo, sr, so = [(0, S_WQ, S_QO), (4096, S_WW, S_WO), (8192, S_WW, S_WO), (None, S_WW, S_WO)][slot]
        m = f's_add_u32 m0, s{S_WB}, {ring + lo}' if lo is not None else f's_mov_b32 m0, s{S_DB + (u % self.RD)}'
        return [('i', m), ('vm', f'buffer_load_dwordx4 v{V_WD+slot}, s[{sr}:{sr+3}], s{so} offen lds', ('Wd', u))]
    def xdma(self, st, n, sb=S_XW, add=0):
        return [('i', f's_add_u32 m0, s{sb}, {add + n*1024}'), ('vm', f'buffer_load_dwordx4 v{V_XD+n}, s[{S_X}:{S_X+3}], s{S_XO} offen lds', ('Xd', st))]
    def xread(self, u, rb):
        r = self.xf(u, rb)
        return ('lds', f'ds_read_b128 a[{r}:{r+3}], v{V_XR + (u & 1)} offset:{rb*2048}', ('X', u))
    def csread(self, u, e):
        r = A_CF + 2 * e
        return ('lds', f'ds_read_b64_tr_b16 a[{r}:{r+1}], v{V_CA[e] if u >= 28 else V_CX + e} offset:{(u % self.RD) * L_WS}', ('C', u, e >> 1))
    def csmfma(self, m, u=28):
        d = A_CS + 4 * m if u >= 28 else A_CX; w = A_CF + 4 * m if m < 3 else self.wf(12)
        return ('i', f'v_mfma_f32_16x16x32_bf16 a[{d}:{d+3}], a[{w}:{w+3}], a[{A_ONE}:{A_ONE+3}], a[{d}:{d+3}]')
    def incs(self):
        return [('i', f's_add_u32 s{S_QO}, s{S_QO}, {32*6144}'), ('i', f's_add_u32 s{S_WO}, s{S_WO}, {32*7168}')]
    def substep(self, typ, u):
        RD = self.RD
        gaps = [[] for _ in range(52)]; pre = [[] for _ in range(52)]
        for j in range(9):
            r = self.wread(typ, u, j + 4)
            gaps[4 * j].append(r[0]); gaps[4 * j + 1].append(r[1])
        if u + 1 < NSUB:
            nxt = sum([self.wread(typ, u + 1, j) for j in range(4)], [])
            for n, r in enumerate(nxt): gaps[40 + n].append(r)
            gaps[39] += [('wlv', [('W', u, 12)], [('Wd', u + 1), ('Xd', (u + 2) >> 1)]), ('i', 's_barrier')]
            for rb in range(4): gaps[8 * rb + 2].append(self.xread(u + 1, rb))
        for j in range(13): pre[4 * j].append(('wl', [('W', u, j)] + ([('X', u)] if j == 0 else [])))
        if self.opt.get('cs', 1):
            if u >= 28:
                for e in range(6): gaps[4 * e + 1].append(self.csread(u, e))
                for m in range(3): gaps[8 * m + 21] += [('wl', [('C', u, m)]), self.csmfma(m)]
                gaps[49].append(self.csmfma(3))
            else:
                for e in range(2): gaps[4 * e + 1].append(self.csread(u, e))
                gaps[36] += [('wl', [('C', u, 0)]), self.csmfma(0, u)]
        if u <= 27:
            for s in range(4):
                d = self.xdma((u + 5) >> 1, s + (0 if u & 1 else 4))
                gaps[8 * s + 6].append(d[0]); gaps[8 * s + 7].append(d[1])
        if not u & 1:
            gaps[38].append(('i', f's_add_u32 s{S_XO}, s{S_XO}, 128'))
            gaps[48] += [('i', f's_mov_b32 s{S_XW}, s{S_XR}'), ('i', f's_add_u32 s{S_XR}, s{S_XR}, 8192')]
            gaps[50] += [('i', f's_cmp_eq_u32 s{S_XR}, s{S_XEND}'), ('i', f's_cselect_b32 s{S_XR}, s{S_XBEG}, s{S_XR}')]
            gaps[51] += [('i', f'v_add_u32 v{V_XR}, s{S_XR}, v{V_XB}'), ('i', f'v_add_u32 v{V_XR+1}, s{S_XR}, v{V_XB+1}')]
        nm = f'{self.name}_{typ}'
        if u & 3 == 2 and u < 28:
            gaps[37].append(('vm', f'buffer_load_dword v{V_T+1}, v{V_T+6}, s[{S_DBG}:{S_DBG+3}], 0 offen sc1', ('cnt', u)))
        if u == 28:
            gaps[0].append(('i', f'v_lshlrev_b32 v{V_XD+7}, 3, v255'))
            gaps[2] += [('wv', [('cnt', 26)]), ('i', f'v_cmp_gt_u32 vcc, 32, v{V_T+1}')]
            gaps[4].append(('i', f's_cbranch_vccnz {nm}_spin\n{nm}_spun:'))
            gaps[6].append(('i', f'v_and_b32 v{V_T+7}, 48, v255'))
            gaps[14].append(('i', f's_mov_b64 exec, s[84:85]\nbuffer_store_dwordx4 a[{A_CX}:{A_CX+3}], v{V_T+7}, s[{S_WS}:{S_WS+3}], s86 offen sc1\ns_mov_b64 exec, -1'))
            gaps[22].append(('i', f'v_min_u32 v{V_T+6}, 51, v255'))
            gaps[23].append(('i', f'v_lshlrev_b32 v{V_T+6}, 4, v{V_T+6}'))
            gaps[6].append(('i', f'v_lshlrev_b32 v{V_XD+4}, 7, v255'))
            gaps[7].append(('vm', f'buffer_load_dwordx2 v[{V_RS}:{V_RS+1}], v{V_XD+7}, s[{S_WS}:{S_WS+3}], s{S_RSO} offen sc1', 'rs'))
            gaps[8].append(('i', f'v_min_u32 v{V_XD+5}, {27*128}, v{V_XD+4}'))
            gaps[9].append(('i', f'v_min_u32 v{V_XD+6}, {15*128}, v{V_XD+4}'))
        if u == 30:
            gaps[self.opt.get('cxg', 30)].append(('vm', f'buffer_load_dwordx4 v[{V_CL}:{V_CL+3}], v{V_T+6}, s[{S_WS}:{S_WS+3}], s87 offen sc1', 'cx'))
        if u == 31:
            gaps[46] += [('wv', ['cx']), ('i', f'v_max3_u32 v{V_T+7}, v{V_CL}, v{V_CL+1}, v{V_CL+2}')]
            gaps[47] += [('i', f'v_max_u32 v{V_T+7}, v{V_T+7}, v{V_CL+3}'), ('i', f'v_cmp_eq_u32 vcc, -1, v{V_T+7}')]
            gaps[48].append(('i', f'v_add_u32 v{V_T+7}, {self.L_CS + 1024}, v{V_T+6}'))
            gaps[50] += [('i', f's_cbranch_vccnz {nm}_cx\n{nm}_cxd:'), ('lds', f'ds_write_b128 v{V_T+7}, v[{V_CL}:{V_CL+3}]', 'rsw')]
            gaps[6].append(('i', f's_lshl_b32 s34, s{S_WAVE}, 9'))
            gaps[7].append(('i', f's_add_u32 s34, s34, {self.L_RS}'))
            gaps[14].append(('i', f'v_lshl_add_u32 v{V_T}, v255, 2, s34'))
            gaps[15].append(('i', f's_lshl_b32 s34, s{S_WAVE}, 6'))
            gaps[22].append(('i', f's_add_u32 s34, s34, {self.L_CS}'))
            gaps[23].append(('i', f'v_and_b32 v{V_T+1}, 48, v255'))
            gaps[30].append(('i', f'v_add_u32 v{V_XD}, {self.L_CS + 768}, v{V_T+1}'))
            gaps[31].append(('i', f'v_add_u32 v{V_T+1}, s34, v{V_T+1}'))
            gaps[40] += [('wv', ['rs']), ('lds', f'ds_write_b32 v{V_T}, v{V_RS}', 'rsw')]
            gaps[41].append(('lds', f'ds_write_b32 v{V_T}, v{V_RS+1} offset:256', 'rsw'))
            gaps[43].append(('i', 's_mov_b32 exec_lo, 0x10001\ns_mov_b32 exec_hi, 0x10001'))
            for m in range(3): gaps[43].append(('lds', f'ds_write_b128 v{V_T+1}, a[{A_CS+4*m}:{A_CS+4*m+3}] offset:{256*m}', 'rsw'))
            gaps[43].append(('i', 's_mov_b64 exec, -1'))
        un = u + RD - 1
        if un < NSUB:
            for s in range(4):
                d = self.wdma(typ, un, s)
                gaps[8 * s + 2].append(d[0]); gaps[8 * s + 3].append(d[1])
            inc = self.incs()
            gaps[34].append(inc[0]); gaps[35].append(inc[1])
        if u == self.opt.get('pfu', 29) and self.opt.get('pf1', 1):
            gaps[3].append(('vm', f'buffer_load_dword v{V_T+8}, v{V_XD+4}, s[68:71], s80 offen', 'pf'))
            gaps[11].append(('vm', f'buffer_load_dword v{V_T+8}, v{V_XD+5}, s[72:75], s81 offen', 'pf'))
            gaps[19].append(('vm', f'buffer_load_dword v{V_T+8}, v{V_XD+6}, s[76:79], s82 offen', 'pf'))
        ops = []
        for m in range(52):
            ops += pre[m]
            j, rb = m >> 2, m & 3
            if (j + (u & 1)) & 1: rb = 3 - rb
            ops.append(self.mfma(typ, j, rb, u))
            ops += gaps[m]
        return ops
    def setup(self, typ):
        k = self.k; U = 5 if typ == 'E' else 9; t = V_T
        k(f'''
        v_lshrrev_b32 v{t}, 3, v255
        s_lshl_b32 s34, s{S_WAVE}, 3
        v_add_u32 v{t+1}, s34, v{t}                 ; k
        v_bfe_u32 v{t+2}, v{t+1}, 1, 1
        v_bfe_u32 v{t+3}, v{t+1}, 3, 1
        v_lshl_or_b32 v{t+2}, v{t+3}, 1, v{t+2}     ; f
        v_bfe_u32 v{t+3}, v255, 1, 2
        v_xor_b32 v{t+2}, v{t+2}, v{t+3}            ; j
        v_and_b32 v{t+3}, 1, v255
        v_lshlrev_b32 v{t+3}, 4, v{t+3}
        v_lshl_or_b32 v{t+2}, v{t+2}, 5, v{t+3}
        v_mul_u32_u24 v{t+1}, 6144, v{t+1}
        v_add_u32 v{t+1}, v{t+1}, v{t+2}
        s_lshl_b32 s34, s{S_P}, 7
        ''')
        if typ == 'E':
            k(f'''s_add_u32 s35, s34, 2048
            v_add_u32 v{V_WD}, s35, v{t+1}
            s_add_u32 s35, s34, 4096
            v_add_u32 v{V_WD+1}, s35, v{t+1}''')
            wslots = [(2, 0, False), (3, 4, True)]; wcol = 0
        else:
            k(f'v_add_u32 v{V_WD}, s34, v{t+1}')
            wslots = [(1, 0, False), (2, 4, False), (3, 8, True)]; wcol = 160
        k(f's_mul_i32 s35, s{S_P}, 448')
        if wcol: k(f's_add_u32 s35, s35, {wcol}')
        magic = {5: 52429, 9: 58255}[U]; sh = {5: 18, 9: 19}[U]; mg8 = {5: 13108, 9: 7282}[U]
        for slot, n0, only0 in wslots:
            if only0: k(f's_mov_b32 s34, {32*n0}')
            else: k(f's_lshl_b32 s34, s{S_WAVE}, 5\n s_add_u32 s34, s34, {32*n0}')
            k(f'''
            v_lshrrev_b32 v{t}, 1, v255
            v_add_u32 v{t}, s34, v{t}                  ; pos
            v_mul_u32_u24 v{t+1}, {mg8}, v{t}
            v_bfe_u32 v{t+1}, v{t+1}, 19, 1
            v_lshlrev_b32 v{t+1}, 2, v{t+1}
            v_xor_b32 v{t}, v{t}, v{t+1}               ; u
            v_mul_u32_u24 v{t+1}, {magic}, v{t}
            v_lshrrev_b32 v{t+1}, {sh}, v{t+1}         ; k
            v_mul_u32_u24 v{t+2}, {U}, v{t+1}
            v_sub_u32 v{t+2}, v{t}, v{t+2}             ; j
            v_mul_u32_u24 v{t+1}, 7168, v{t+1}
            v_lshl_add_u32 v{t+1}, v{t+2}, 5, v{t+1}
            v_and_b32 v{t+2}, 1, v255
            v_lshl_add_u32 v{t+1}, v{t+2}, 4, v{t+1}
            v_add_u32 v{V_WD+slot}, s35, v{t+1}
            ''')
            if only0:
                k(f'''s_cmp_eq_u32 s{S_WAVE}, 0
                s_cselect_b32 s34, -1, 0
                v_and_b32 v{V_WD+slot}, s34, v{V_WD+slot}
                s_mov_b32 s36, {self.L_DUM}''')
                for r in range(self.RD):
                    k(f's_cselect_b32 s{S_DB+r}, {r*L_WS + 12288}, s36')
    def setup2(self, typ):
        U = 5 if typ == 'E' else 9; t = V_T
        o = f'''
        v_lshrrev_b32 v{t}, 4, v255
        v_bfe_u32 v{t+1}, v255, 2, 2
        v_lshl_add_u32 v{t+1}, v{t}, 3, v{t+1}      ; k0
        v_mul_u32_u24 v{t+2}, {U}, v{t+1}           ; a
        v_and_b32 v{t+3}, 1, v{t}
        v_lshlrev_b32 v{t+3}, 2, v{t+3}             ; x
        v_and_b32 v{t+4}, 3, v255
        v_lshlrev_b32 v{t+4}, 3, v{t+4}
        '''
        for e in range(8):
            o += f'''v_add_u32 v{t+5}, {e}, v{t+2}
            v_xor_b32 v{t+5}, v{t+5}, v{t+3}
            v_lshl_add_u32 v{V_WR+e}, v{t+5}, 5, v{t+4}
            '''
        npan = 13 - U
        for e in range(6):
            m, tt = e >> 1, e & 1
            if 4 * m >= npan:
                o += f'''s_add_u32 s34, s{S_WAVE}, {4*U*tt + 4*m - npan}
                s_and_b32 s35, s34, 7
                s_lshr_b32 s34, s34, 3
                s_lshl_b32 s34, s34, 8
                s_add_u32 s34, s34, {npan*1024}
                v_add_u32 v{t+5}, s35, v{t+2}
                v_xor_b32 v{t+5}, v{t+5}, v{t+3}
                v_lshl_add_u32 v{t+5}, v{t+5}, 5, v{t+4}
                v_add_u32 v{V_CA[e]}, s34, v{t+5}
                '''
        for tt in range(2):
            o += f'''s_add_u32 s34, s83, {4*U*tt - npan + 64}
            s_and_b32 s35, s34, 7
            s_lshr_b32 s34, s34, 3
            s_lshl_b32 s34, s34, 8
            s_add_u32 s34, s34, {npan*1024 - 2048}
            v_add_u32 v{t+5}, s35, v{t+2}
            v_xor_b32 v{t+5}, v{t+5}, v{t+3}
            v_lshl_add_u32 v{t+5}, v{t+5}, 5, v{t+4}
            v_add_u32 v{V_CX+tt}, s34, v{t+5}
            '''
        o += f'''
        v_bfe_u32 v{t+5}, v255, 3, 1
        v_lshrrev_b32 v{t+3}, 1, v{t+3}
        v_or_b32 v{t+5}, v{t+5}, v{t+3}             ; f
        v_lshl_add_u32 v{t+4}, v{t+1}, 7, v{t+4}
        '''
        for j in range(4):
            o += f'''v_xor_b32 v{t+6}, {j}, v{t+5}
            v_lshl_add_u32 v{V_PR+j}, v{t+6}, 5, v{t+4}
            '''
        o += f'''v_xor_b32 v{t+6}, s{S_WAVE}, v{t+5}
        v_lshl_add_u32 v{t+6}, v{t+6}, 5, v{t+4}
        '''
        for e in range(6):
            if 4 * (e >> 1) < npan: o += f'v_add_u32 v{V_CA[e]}, {(e >> 1) * 4096 + 512 * (e & 1)}, v{t+6}\n'
        o += f'''s_lshr_b32 s34, s83, 2
        s_lshl_b32 s34, s34, 12
        s_add_u32 s35, s34, 512
        s_cmp_ge_u32 s83, {npan}|s_cbranch_scc1 {self.name}_{typ}_win|v_add_u32 v{V_CX}, s34, v{t+6}|v_add_u32 v{V_CX+1}, s35, v{t+6}|{self.name}_{typ}_win:
        '''
        o += f'''
        v_and_b32 v{t+5}, 15, v255
        v_lshrrev_b32 v{t+6}, 1, v{t+5}
        v_xor_b32 v{t+6}, v{t+6}, v{t}
        v_lshlrev_b32 v{t+6}, 4, v{t+6}
        v_lshl_add_u32 v{V_XB}, v{t+5}, 7, v{t+6}
        v_xor_b32 v{V_XB+1}, 64, v{V_XB}
        v_add_u32 v{V_XR}, s{S_XBEG}, v{V_XB}
        v_add_u32 v{V_XR+1}, s{S_XBEG}, v{V_XB+1}
        v_mov_b32 v{t+5}, 0x3f803f80
        '''
        for r in range(4): o += f'v_accvgpr_write_b32 a{A_ONE+r}, v{t+5}\n'
        for r in list(range(16)) + [20, 21, 22, 23]: o += f'v_accvgpr_write_b32 a{A_CS+r}, 0\n'
        o += f'v_and_b32 v{t+6}, 7, v255\nv_lshlrev_b32 v{t+6}, 5, v{t+6}\n'
        o += f'''
        s_lshl_b32 s34, s2, 2
        s_add_u32 s34, s34, s{S_WAVE}
        s_lshl_b32 s80, s34, 13
        s_mul_i32 s81, s34, {28*128}
        s_lshl_b32 s82, s34, 11
        '''
        if self.RD > 4:
            for j in range(12): o += f'v_add_u32 v{V_PR2+j}, {4*L_WS}, v{V_PR+j}\n'
        return o
    def mainloop(self, typ):
        k = self.k; RD = self.RD; q = Q(); ops = []
        for n in range(4): ops.append(('vm', f'buffer_load_dwordx4 v[{4*n}:{4*n+3}], v20, s[{S_X}:{S_X+3}], s55 offen offset:{16*n}', 'sx'))
        G = []
        for u in range(RD - 1):
            g = []
            for s in range(4):
                g += [self.wdma(typ, u, s)] + [self.xdma(u, n, S_XBEG, u * 8192) for n in ([2 * s, 2 * s + 1] if u < 2 else [s])]
            g[-1] = g[-1] + self.incs() + ([('i', f's_add_u32 s{S_XO}, s{S_XO}, 128')] if u < 2 else [])
            G.append(g)
        def weave(dm, text):
            L = [x.strip().replace('|', '\n') for x in text.split('\n') if x.strip() and not x.strip().startswith(';')]
            o = []; n = len(dm)
            for i, d in enumerate(dm):
                part = L[i * len(L) // n:(i + 1) * len(L) // n]
                o += [d[0], ('i', 's_nop 0')] + d[1:] + [('i', x) for x in part]
            return o
        zero = lambda a, b: ''.join(f'v_mov_b32 v{r}, 0\n' for r in range(a, b))
        sa, sb = self.rowstats(typ)
        ops += weave(G[0] + G[1], self.setup2(typ) + zero(24, 208))
        ops.append(('wv', ['sx']))
        ops += weave(G[2], sa)
        ops.append(('i', sb + zero(0, 24)))
        ops += [('wv', [('Wd', 0), ('Xd', 0)]), ('i', 's_barrier')]
        for rb in range(4): ops.append(self.xread(0, rb))
        for j in range(4): ops += self.wread(typ, 0, j)
        t, _ = resolve(ops, q)
        k('\n'.join(t))
        if self.opt.get('stamp'):
            stamp(k, self.opt, 1, S_WS, V_T); q.v.append('st'); q.l = []
        nit = NSUB // RD
        k(f's_mov_b32 s{S_IT}, {nit - 1}')
        lab = k.label('loop')
        body = lambda it: sum([self.substep(typ, RD * it + x) for x in range(RD)], [])
        t = loop_resolve(body, range(nit - 1), q)
        k(f'.p2align 4\n{lab}:')
        k('\n'.join(t))
        k(f's_cmp_eq_u32 s{S_IT}, s56\ns_cbranch_scc1 {self.name}_{typ}_sig\n{self.name}_{typ}_sigd:')
        k(f's_sub_u32 s{S_IT}, s{S_IT}, 1\ns_cmp_lg_u32 s{S_IT}, 0\ns_cbranch_scc1 {lab}')
        t, _ = resolve(body(nit - 1), q)
        k('\n'.join(t))
        k(f'''s_nop 4
        s_mov_b32 exec_lo, 0x10001
        s_mov_b32 exec_hi, 0x10001
        ds_write_b128 v{V_XD}, a[{A_CS+12}:{A_CS+15}]
        s_mov_b64 exec, -1
        s_waitcnt lgkmcnt(0)
        s_barrier''')
        stamp(k, self.opt, 2, S_WS, V_T)
    def outline(self, typ):
        nm = f'{self.name}_{typ}'
        self.k(f'''{nm}_sig:
        v_mov_b32 v{V_T}, 1
        s_mov_b64 exec, 1
        buffer_atomic_add v{V_T}, off, s[{S_DBG}:{S_DBG+3}], s{S_CNT} sc1
        s_mov_b64 exec, -1
        s_branch {nm}_sigd
        {nm}_spin:
        s_mov_b32 s35, 0x40000
        {nm}_spin1:
        buffer_load_dword v{V_T+1}, v{V_T+6}, s[{S_DBG}:{S_DBG+3}], 0 offen sc1
        s_waitcnt vmcnt(0)
        v_cmp_gt_u32 vcc, 32, v{V_T+1}
        s_sub_u32 s35, s35, 1
        s_cbranch_scc1 {nm}_spun
        s_cbranch_vccnz {nm}_spin1
        s_branch {nm}_spun
        {nm}_cx:
        s_mov_b32 s35, 0x40000
        {nm}_cx1:
        buffer_load_dwordx4 v[{V_CL}:{V_CL+3}], v{V_T+6}, s[{S_WS}:{S_WS+3}], s87 offen sc1
        s_waitcnt vmcnt(0)
        v_max3_u32 v{V_XD+1}, v{V_CL}, v{V_CL+1}, v{V_CL+2}
        v_max_u32 v{V_XD+1}, v{V_XD+1}, v{V_CL+3}
        v_cmp_eq_u32 vcc, -1, v{V_XD+1}
        s_sub_u32 s35, s35, 1
        s_cbranch_scc1 {nm}_cxd
        s_cbranch_vccnz {nm}_cx1
        s_branch {nm}_cxd''')
    def rowstats(self, typ):
        class B:
            t = ''
            def __call__(s, x): s.t += x + '\n'
        k = B(); nm = f'{self.name}_{typ}'
        k('v_mov_b32 v21, 0x3f803f80')
        for n in range(16):
            a, b = 16 + (n & 1), 18 + (n & 1)
            k(f'v_dot2_f32_bf16 v{a}, v{n}, v21, {"v%d" % a if n > 1 else 0}\nv_dot2_f32_bf16 v{b}, v{n}, v{n}, {"v%d" % b if n > 1 else 0}')
        k(f'''v_mov_b32 v0, -1
        v_mov_b32 v1, -1
        v_and_b32 v8, 48, v255
        v_mov_b32 v2, -1
        v_mov_b32 v3, -1
        v_mov_b32 v4, 0
        v_add_f32 v16, v16, v17
        v_add_f32 v17, v18, v19
        v_lshlrev_b32 v5, 3, v255
        v_lshlrev_b32 v6, 2, v255''')
        for r in (8, 4, 2, 1):
            k(f'v_add_f32_dpp v16, v16, v16 row_ror:{r} row_mask:0xf bank_mask:0xf\nv_add_f32_dpp v17, v17, v17 row_ror:{r} row_mask:0xf bank_mask:0xf\ns_nop 0')
        k(f'''v_mov_b32 v18, v16
        v_mov_b32 v19, v17
        v_lshrrev_b32 v7, 5, v255
        v_lshlrev_b32 v7, 3, v7
        v_permlane16_swap_b32 v18, v16
        v_permlane16_swap_b32 v19, v17
        v_add_f32 v16, v16, v18
        v_add_f32 v17, v17, v19''')
        ln_finish(k, 16, 17, 1024, 18)
        k(f'''v_mul_f32 v18, v16, v17
        v_mov_b32 v16, v17
        v_sub_f32 v17, 0, v18''')
        ta = k.t; k.t = ''
        k(f'''s_mov_b32 exec_lo, 1
        s_mov_b32 exec_hi, 1
        buffer_store_dwordx2 v[16:17], v7, s[{S_WS}:{S_WS+3}], s57 offen sc1
        s_mov_b64 exec, s[84:85]
        buffer_store_dwordx4 v[0:3], v8, s[{S_WS}:{S_WS+3}], s86 offen sc1
        s_mov_b64 exec, -1
        s_cmp_lt_u32 s{S_P}, 8
        s_cbranch_scc1 {nm}_nost
        buffer_store_dwordx2 v[2:3], v5, s[{S_WS}:{S_WS+3}], s58 offen sc1
        {nm}_nost:
        s_cmp_lg_u32 s{S_WAVE}, 0
        s_cbranch_scc1 {nm}_nofl
        buffer_store_dword v4, v6, s[{S_WS}:{S_WS+3}], s59 offen
        {nm}_nofl:
        s_nop 1''')
        return ta, k.t
    def prologue(self):
        k = self.k; name = self.name
        k(f'''
        s_cmp_ge_u32 s2, 256
        s_cbranch_scc1 {name}_end
        s_load_dwordx2 s[{S_X}:{S_X+1}], s[0:1], 0
        s_load_dwordx2 s[{S_DBG}:{S_DBG+1}], s[0:1], 72
        s_load_dwordx2 s[{S_WQ}:{S_WQ+1}], s[0:1], 8
        s_load_dwordx2 s[{S_WW}:{S_WW+1}], s[0:1], 32
        s_load_dwordx2 s[{S_WS}:{S_WS+1}], s[0:1], 80
        s_load_dwordx2 s[68:69], s[0:1], 40
        s_load_dwordx2 s[72:73], s[0:1], 56
        s_load_dwordx2 s[76:77], s[0:1], 16
        v_lshrrev_b32 v1, 6, v0
        v_and_b32 v255, 63, v0
        ''')
        srd(k, 68, 0, 8 << 20); srd(k, 72, 0, 1792 * 2048); srd(k, 76, 0, 2 << 20)
        srd(k, S_X, 0, 4 << 20); srd(k, S_DBG, 0, 256)
        k(f'v_readfirstlane_b32 s{S_WAVE}, v1')
        srd(k, S_WQ, 0, 1024 * 6144); srd(k, S_WW, 0, 1024 * 7168); srd(k, S_WS, 0, 0x10000000)
        k(f'''
        s_and_b32 s34, s2, 1
        s_lshl_b32 s34, s34, 2
        s_bfe_u32 s35, s2, 0x20003
        s_add_u32 s{S_RG}, s34, s35
        s_bfe_u32 s34, s2, 0x20001
        s_lshl_b32 s34, s34, 3
        s_lshr_b32 s35, s2, 5
        s_add_u32 s{S_CG}, s34, s35
        s_lshr_b32 s{S_P}, s{S_CG}, 1
        s_lshl_b32 s{S_WB}, s{S_WAVE}, 10
        s_mov_b32 s{S_XO}, 0
        s_mov_b32 s{S_QO}, 0
        s_mov_b32 s{S_WO}, 0
        s_lshl_b32 s34, s{S_RG}, 19
        s_lshl_b32 s35, s{S_WAVE}, 17
        s_add_u32 s34, s34, s35
        v_lshrrev_b32 v1, 4, v255
        v_and_b32 v2, 7, v255
        v_xor_b32 v1, v1, v2
        v_lshl_add_u32 v1, v1, 4, s34
        v_lshrrev_b32 v2, 3, v255
        v_lshl_add_u32 v{V_XD}, v2, 11, v1
        v_xor_b32 v1, 64, v{V_XD}
        v_add_u32 v{V_XD+1}, 16384, v1
        v_lshlrev_b32 v20, 6, v255
        s_mul_i32 s{S_XBEG}, s{S_WAVE}, 24576
        s_add_u32 s{S_XBEG}, s{S_XBEG}, {self.L_X}
        s_add_u32 s{S_XEND}, s{S_XBEG}, 24576
        s_add_u32 s{S_XW}, s{S_XBEG}, 16384
        s_mov_b32 s{S_XR}, s{S_XBEG}
        s_lshl_b32 s{S_CNT}, s{S_RG}, 5
        s_lshl_b32 s34, s{S_RG}, 8
        s_lshl_b32 s35, s{S_WAVE}, 6
        s_add_u32 s35, s34, s35
        s_lshl_b32 s35, s35, 3
        s_add_u32 s{S_RSO}, s35, {WS_RS}
        s_and_b32 s36, s{S_CG}, 15
        s_lshl_b32 s36, s36, 14
        s_add_u32 s58, s35, s36
        s_add_u32 s58, s58, {WS_ST}
        s_lshl_b32 s35, s{S_CG}, 3
        s_add_u32 s34, s34, s35
        s_lshl_b32 s35, s{S_WAVE}, 1
        s_add_u32 s34, s34, s35
        s_lshl_b32 s55, s34, 11
        s_lshl_b32 s57, s34, 3
        s_add_u32 s57, s57, {WS_RS}
        s_lshl_b32 s59, s2, 8
        s_add_u32 s59, s59, {WS_FLAG}
        s_lshl_b32 s83, s{S_RG}, 2
        s_add_u32 s83, s83, s{S_WAVE}
        s_cmp_le_u32 s83, 12
        s_cselect_b32 s84, 0x10001, 0
        s_mov_b32 s85, s84
        s_min_u32 s83, s83, 12
        s_lshl_b32 s87, s{S_CG}, 10
        s_add_u32 s87, s87, {WS_CX}
        s_lshl_b32 s86, s83, 6
        s_add_u32 s86, s86, s87
        s_cmp_eq_u32 s{S_WAVE}, 0
        s_cselect_b32 s56, {NSUB // 4 - 1}, -1
        ''')
        for i in range(2, 8): k(f'v_add_u32 v{V_XD+i}, {(i >> 1)*32768}, v{V_XD + (i & 1)}')
    def build(self):
        from k1epi import epilogue
        k = self.k; name = self.name
        self.prologue()
        k(f's_bitcmp1_b32 s{S_CG}, 0\ns_cbranch_scc1 {name}_O')
        for typ in 'EO':
            if typ == 'O': k(f'{name}_O:')
            self.setup(typ)
            k('s_waitcnt lgkmcnt(0)')
            stamp(k, self.opt, 0, S_WS, V_T)
            if self.opt.get('stamp'): k('s_waitcnt vmcnt(0)')
            self.mainloop(typ)
            epilogue(self, typ)
            stamp(k, self.opt, 6, S_WS, V_T)
            k('s_endpgm')
            self.outline(typ)
        k(f'{name}_end:\ns_endpgm')
        return k
```

```python
from common import *
from k1 import acc, S_WS, S_WAVE, S_RG, S_CG, S_P
import math
VC = 208
VT = 212
VS = 228
VA = 244
SB = 60
LOG2E = 1.4426950408889634
C1 = -2.0 * math.sqrt(2.0 / math.pi) * LOG2E
C2 = C1 * 0.044715

def pairs(regs4):
    return [r + o for r in regs4 for o in (0, 2)]

def gelu(k, regs4, tset, stats_rb=None, first=False):
    P = pairs(regs4); T = [VT + tset * 8 + 2 * i for i in range(len(P))]
    for p, t in zip(P, T): k(f'v_pk_mul_f32 v[{t}:{t+1}], v[{p}:{p+1}], v[{p}:{p+1}]')
    for p, t in zip(P, T): k(f'v_pk_fma_f32 v[{t}:{t+1}], v[{t}:{t+1}], v[{VC}:{VC+1}], v[{VC}:{VC+1}] op_sel:[0,0,1] op_sel_hi:[1,0,1]')
    for p, t in zip(P, T): k(f'v_pk_mul_f32 v[{t}:{t+1}], v[{t}:{t+1}], v[{p}:{p+1}]')
    for t in T: k(f'v_exp_f32 v{t}, v{t}\nv_exp_f32 v{t+1}, v{t+1}')
    for t in T: k(f'v_pk_add_f32 v[{t}:{t+1}], v[{t}:{t+1}], 1.0 op_sel_hi:[1,0]')
    for t in T: k(f'v_rcp_f32 v{t}, v{t}\nv_rcp_f32 v{t+1}, v{t+1}')
    for p, t in zip(P, T): k(f'v_pk_mul_f32 v[{p}:{p+1}], v[{p}:{p+1}], v[{t}:{t+1}]')
    if stats_rb is not None:
        s = VS + 2 * stats_rb; q = VS + 8 + 2 * stats_rb
        for n, p in enumerate(P):
            if first and n == 0:
                k(f'v_pk_mul_f32 v[{q}:{q+1}], v[{p}:{p+1}], v[{p}:{p+1}]')
            elif first and n == 1:
                k(f'v_pk_add_f32 v[{s}:{s+1}], v[{P[0]}:{P[0]+1}], v[{p}:{p+1}]')
                k(f'v_pk_fma_f32 v[{q}:{q+1}], v[{p}:{p+1}], v[{p}:{p+1}], v[{q}:{q+1}]')
            else:
                k(f'v_pk_add_f32 v[{s}:{s+1}], v[{s}:{s+1}], v[{p}:{p+1}]')
                k(f'v_pk_fma_f32 v[{q}:{q+1}], v[{p}:{p+1}], v[{p}:{p+1}], v[{q}:{q+1}]')

def phi(k, regs4, tset):
    P = pairs(regs4); T = [VT + tset * 8 + 2 * i for i in range(len(P))]
    c = VC + 2
    for p, t in zip(P, T): k(f'v_pk_mul_f32 v[{t}:{t+1}], v[{p}:{p+1}], v[{c}:{c+1}] op_sel_hi:[1,0]')
    for p in P: k(f'v_pk_add_f32 v[{p}:{p+1}], v[{p}:{p+1}], 1.0 op_sel_hi:[1,0]')
    for t in T: k(f'v_exp_f32 v{t}, v{t} clamp\nv_exp_f32 v{t+1}, v{t+1} clamp')
    for p, t in zip(P, T): k(f'v_max_f32 v{p}, v{p}, v{t}\nv_max_f32 v{p+1}, v{p+1}, v{t+1}')
    for p in P: k(f'v_pk_add_f32 v[{p}:{p+1}], v[{p}:{p+1}], v[{c}:{c+1}] op_sel:[0,1] op_sel_hi:[1,1]')

def pack(k, a, b=None):
    k(f'v_cvt_pk_bf16_f32 v{a}, v{a}, v{a+1}\nv_cvt_pk_bf16_f32 v{a+1}, v{a+2}, v{a+3}')
    if b is not None:
        k(f'v_cvt_pk_bf16_f32 v{a+2}, v{b}, v{b+1}\nv_cvt_pk_bf16_f32 v{a+3}, v{b+2}, v{b+3}')

def win_groups(typ):
    if typ == 'E': return [(8, 9, 0, None), (10, 11, 1024, None), (12, None, 2048, 0)]
    return [(5, 6, 0, None), (7, 8, 1024, None), (9, 10, 2048, None), (11, 12, 3072, None), (4, None, 0, 1)]

def bases(k, s0, ws, ncp, cp_sgpr):
    k(f'''s_lshl_b32 s34, s{S_RG}, 4
    s_lshl_b32 s35, s{S_WAVE}, 2
    s_add_u32 s34, s34, s35
    s_mul_i32 s34, s34, {ncp}
    s_add_u32 s34, s34, s{cp_sgpr}
    s_lshl_b32 s34, s34, 10
    s_add_u32 s{s0}, s34, {ws}''')
    for rb in range(1, 4): k(f's_add_u32 s{s0+rb}, s{s0}, {rb*ncp*1024}')

def lnfix(K, k, blocks, xw=False):
    T = 212; A0, A1 = 250, 251
    k(f's_lshl_b32 s34, s{S_WAVE}, 9\ns_add_u32 s34, s34, {K.L_RS}')
    if not xw:
        XS, CQ, C2 = 220, 228, 236
        k(f'''v_and_b32 v{A0}, 15, v255
        v_lshl_add_u32 v{A0}, v{A0}, 2, s34
        v_and_b32 v{A1}, 48, v255
        v_add_u32 v{A1}, {K.L_CS}, v{A1}''')
        for rb in range(4): k(f'ds_read2_b32 v[{XS+2*rb}:{XS+2*rb+1}], v{A0} offset0:{16*rb} offset1:{16*rb+64}')
        rd = lambda n: k(f'ds_read_b128 v[{CQ+4*(n&1)}:{CQ+4*(n&1)+3}], v{A1} offset:{64*blocks[n]}\nds_read_b128 v[{C2+4*(n&1)}:{C2+4*(n&1)+3}], v{A1} offset:{64*blocks[n]+1024}')
        rd(0)
        for n, j in enumerate(blocks):
            if n + 1 < len(blocks): rd(n + 1)
            k(f's_waitcnt lgkmcnt({2 if n + 1 < len(blocks) else 0})')
            c = CQ + 4 * (n & 1)
            for o in (0, 2): k(f'v_pk_add_f32 v[{c+o}:{c+o+1}], v[{c+o}:{c+o+1}], v[{C2+4*(n&1)+o}:{C2+4*(n&1)+o+1}]')
            for r0 in (0, 2):
                L = [(rb, o) for rb in (r0, r0 + 1) for o in (0, 2)]
                for i, (rb, o) in enumerate(L):
                    k(f'v_pk_mul_f32 v[{T+2*i}:{T+2*i+1}], v[{c+o}:{c+o+1}], v[{XS+2*rb}:{XS+2*rb+1}] op_sel:[0,1] op_sel_hi:[1,1]')
                for i, (rb, o) in enumerate(L):
                    p = acc(j, rb) + o
                    k(f'v_pk_fma_f32 v[{p}:{p+1}], v[{p}:{p+1}], v[{XS+2*rb}:{XS+2*rb+1}], v[{T+2*i}:{T+2*i+1}] op_sel_hi:[1,0,1]')
    else:
        CS, RQ = 220, 228
        k(f'''v_and_b32 v{A0}, 48, v255
        v_add_u32 v{A0}, s34, v{A0}
        v_and_b32 v{A1}, 15, v255
        v_lshlrev_b32 v{A1}, 2, v{A1}
        v_add_u32 v{A1}, {K.L_CS}, v{A1}''')
        for n in range(4): k(f'ds_read2_b32 v[{CS+2*n}:{CS+2*n+1}], v{A1} offset0:{32*n} offset1:{32*n+16}')
        k(f'v_add_u32 v{A1}, 1024, v{A1}')
        for n in range(4): k(f'ds_read2_b32 v[{T+2*n}:{T+2*n+1}], v{A1} offset0:{32*n} offset1:{32*n+16}')
        def rd(rb):
            r = RQ + 8 * (rb & 1)
            k(f'ds_read_b128 v[{r}:{r+3}], v{A0} offset:{64*rb}\nds_read_b128 v[{r+4}:{r+7}], v{A0} offset:{64*rb+256}')
        rd(0)
        for rb in range(4):
            if rb < 3: rd(rb + 1)
            k(f's_waitcnt lgkmcnt({2 if rb < 3 else 0})')
            r = RQ + 8 * (rb & 1)
            if rb == 0:
                for n in range(4): k(f'v_pk_add_f32 v[{CS+2*n}:{CS+2*n+1}], v[{CS+2*n}:{CS+2*n+1}], v[{T+2*n}:{T+2*n+1}]')
            for j0 in range(0, 8, 2):
                L = [(j, o) for j in (j0, j0 + 1) for o in (0, 2)]
                for i, (j, o) in enumerate(L):
                    k(f'v_pk_mul_f32 v[{T+2*i}:{T+2*i+1}], v[{r+4+o}:{r+5+o}], v[{CS+j0}:{CS+j0+1}] op_sel:[0,{j&1}] op_sel_hi:[1,{j&1}]')
                for i, (j, o) in enumerate(L):
                    p = acc(j, rb) + o
                    k(f'v_pk_fma_f32 v[{p}:{p+1}], v[{p}:{p+1}], v[{r+o}:{r+o+1}], v[{T+2*i}:{T+2*i+1}]')

def qpart(K, k):
    lnfix(K, k, [0, 1, 2, 3])
    k(f's_lshl_b32 s36, s{S_P}, 1')
    bases(k, SB + 4, WS_PQ, 32, 36)
    n = 0
    for hh in range(2):
        for rb in range(4):
            a, b = acc(2 * hh, rb), acc(2 * hh + 1, rb)
            phi(k, [a, b], n & 1); n += 1
            pack(k, a, b)
            k(f'buffer_store_dwordx4 v[{a}:{a+3}], v{VA}, s[{S_WS}:{S_WS+3}], s{SB+4+rb} offen offset:{hh*1024}')

def kvpart(K, k):
    lnfix(K, k, list(range(8)), True)
    n = 0
    for j in range(4):
        for ks in range(2):
            a, b = acc(j, 2 * ks), acc(j, 2 * ks + 1)
            phi(k, [a, b], n & 1); n += 1
            pack(k, a, b)
    for j in range(4, 8):
        for ks in range(2): pack(k, acc(j, 2 * ks), acc(j, 2 * ks + 1))
    free = [acc(j, rb) for j in range(8) for rb in (1, 3)]
    ones = free[12]
    for r in range(4): k(f'v_mov_b32 v{ones+r}, 0x3f803f80')
    k('s_nop 1')
    blocks = []
    for hh in range(2):
        for db in range(2):
            for eb in range(3): blocks.append((hh, db, eb))
    for ks in range(2):
        for n, (hh, db, eb) in enumerate(blocks):
            d = free[n]; a = acc(2 * hh + db, 2 * ks)
            b = acc(4 + 2 * hh + eb, 2 * ks) if eb < 2 else ones
            c = f'v[{d}:{d+3}]' if ks else '0'
            k(f'v_mfma_f32_16x16x32_bf16 v[{d}:{d+3}], v[{a}:{a+3}], v[{b}:{b+3}], {c}')
    k(f'''s_mul_i32 s34, s{S_WAVE}, {K.KVS}
    s_add_u32 s34, s34, {K.L_KV}
    v_add_u32 v{VA+4}, s34, v{VA}
    s_mul_i32 s34, s{S_WAVE}, 3072
    s_add_u32 s34, s34, {K.L_KV}
    v_add_u32 v{VA+5}, s34, v{VA}
    v_add_u32 v250, {2*K.KVS}, v{VA+5}
    s_nop 1''')
    for n in range(12):
        k(f'ds_write_b128 v{VA+4}, v[{free[n]}:{free[n]+3}] offset:{n*1024}')
    k('s_waitcnt lgkmcnt(0)\ns_barrier')
    tmp = [acc(j, 0) for j in range(8)] + [acc(j, 2) for j in range(4)]
    for n in range(3):
        for w in range(4):
            t = tmp[n * 4 + w]
            k(f'ds_read_b128 v[{t}:{t+3}], v{VA+5 if w < 2 else 250} offset:{(w%2)*K.KVS + n*1024}')
    k(f'''s_lshl_b32 s34, s{S_RG}, 5
    s_lshl_b32 s35, s{S_P}, 1
    s_add_u32 s34, s34, s35
    s_mul_i32 s34, s34, 6
    s_mul_i32 s35, s{S_WAVE}, 3
    s_add_u32 s34, s34, s35
    s_lshl_b32 s34, s34, 10
    s_add_u32 s34, s34, {WS_KVP}''')
    for n in range(3):
        t = tmp[n * 4:n * 4 + 4]
        k(f's_waitcnt lgkmcnt({8 - 4*n})')
        for o in (0, 2):
            k(f'v_pk_add_f32 v[{t[0]+o}:{t[0]+o+1}], v[{t[0]+o}:{t[0]+o+1}], v[{t[1]+o}:{t[1]+o+1}]')
            k(f'v_pk_add_f32 v[{t[2]+o}:{t[2]+o+1}], v[{t[2]+o}:{t[2]+o+1}], v[{t[3]+o}:{t[3]+o+1}]')
        for o in (0, 2):
            k(f'v_pk_add_f32 v[{t[0]+o}:{t[0]+o+1}], v[{t[0]+o}:{t[0]+o+1}], v[{t[2]+o}:{t[2]+o+1}]')
        k(f'buffer_store_dwordx4 v[{t[0]}:{t[0]+3}], v{VA}, s[{S_WS}:{S_WS+3}], s34 offen offset:{n*1024}')

def epilogue(K, typ):
    k = K.k; name = K.name
    G = win_groups(typ)
    k(f'''
    v_mov_b32 v{VC}, {f2u(C2):#x}
    v_mov_b32 v{VC+1}, {f2u(C1):#x}
    v_mov_b32 v{VC+2}, {f2u(LOG2E):#x}
    v_mov_b32 v{VC+3}, {f2u(1e-6):#x}
    v_lshlrev_b32 v{VA}, 4, v255
    s_and_b32 s36, s{S_P}, 7
    s_mul_i32 s36, s36, 7
    ''')
    if typ == 'O': k('s_add_u32 s36, s36, 2')
    lnfix(K, k, [j for g in G for j in g[:2] if j is not None])
    k(f's_cmp_ge_u32 s{S_P}, 8\ns_cbranch_scc1 {name}_{typ}_z2')
    bases(k, SB, WS_Z1, 56, 36)
    k(f'v_add_u32 v{VA+1}, {1024 if typ == "O" else 0}, v{VA}')
    n = 0
    for (ja, jb, off, hb) in G:
        if jb is not None:
            for rb in range(4):
                a, b = acc(ja, rb), acc(jb, rb)
                gelu(k, [a, b], n & 1); n += 1
                pack(k, a, b)
                k(f'buffer_store_dwordx4 v[{a}:{a+3}], v{VA+1}, s[{S_WS}:{S_WS+3}], s{SB+rb} offen offset:{off}')
        else:
            for rb in (0, 2):
                a, b = acc(ja, rb), acc(ja, rb + 1)
                gelu(k, [a, b], n & 1); n += 1
                pack(k, a); pack(k, b)
                k(f'buffer_store_dwordx2 v[{a}:{a+1}], v{VA}, s[{S_WS}:{S_WS+3}], s{SB+rb} offen offset:{off + 8*hb}')
                k(f'buffer_store_dwordx2 v[{b}:{b+1}], v{VA}, s[{S_WS}:{S_WS+3}], s{SB+rb+1} offen offset:{off + 8*hb}')
    stamp(k, K.opt, 3, S_WS, 250)
    if typ == 'O': qpart(K, k)
    else: kvpart(K, k)
    stamp(k, K.opt, 4, S_WS, 250)
    stamp(k, K.opt, 5, S_WS, 250)
    k(f's_branch {name}_{typ}_done')
    k(f'{name}_{typ}_z2:')
    bases(k, SB, WS_Z2, 56, 36)
    n = 0
    for gi, (ja, jb, off, hb) in enumerate(G):
        for rb in range(4):
            regs = [acc(ja, rb)] + ([acc(jb, rb)] if jb is not None else [])
            gelu(k, regs, n & 1, stats_rb=rb, first=(gi == 0)); n += 1
    S = [VS + 2 * rb for rb in range(4)]; Qs = [VS + 8 + 2 * rb for rb in range(4)]
    for r in S + Qs: k(f'v_add_f32 v{r}, v{r}, v{r+1}')
    k(f'''s_lshl_b32 s34, s{S_RG}, 8
    s_lshl_b32 s35, s{S_WAVE}, 6
    s_add_u32 s34, s34, s35
    s_lshl_b32 s34, s34, 3
    s_add_u32 s37, s34, {WS_ST}
    s_and_b32 s35, s{S_CG}, 15
    s_lshl_b32 s35, s35, 14
    s_add_u32 s38, s37, s35''')
    for X in (S, Qs):
        k(f'v_permlane32_swap_b32 v{X[0]}, v{X[2]}\nv_permlane32_swap_b32 v{X[1]}, v{X[3]}')
    for X in (S, Qs):
        k(f'v_add_f32 v{X[0]}, v{X[0]}, v{X[2]}\nv_add_f32 v{X[1]}, v{X[1]}, v{X[3]}')
    k(f'v_lshlrev_b32 v{VA+3}, 3, v255\ns_nop 0')
    for X in (S, Qs): k(f'v_permlane16_swap_b32 v{X[0]}, v{X[1]}')
    k(f'v_add_f32 v{VS}, v{S[0]}, v{S[1]}\nv_add_f32 v{VS+1}, v{Qs[0]}, v{Qs[1]}')
    k(f'buffer_store_dwordx2 v[{VS}:{VS+1}], v{VA+3}, s[{S_WS}:{S_WS+3}], s38 offen sc1')
    stamp(k, K.opt, 3, S_WS, 250)
    if typ == 'O': qpart(K, k)
    else: kvpart(K, k)
    stamp(k, K.opt, 4, S_WS, 250)
    t = VT
    k(f'''
    v_bfe_u32 v{t}, v255, 2, 1
    v_lshlrev_b32 v{t}, 9, v{t}
    v_bfe_u32 v{t+1}, v255, 3, 1
    v_lshl_add_u32 v{t}, v{t+1}, 7, v{t}
    v_and_b32 v{t+1}, 3, v255
    v_lshl_add_u32 v{t}, v{t+1}, 5, v{t}
    v_bfe_u32 v{t+1}, v255, 5, 1
    v_lshl_add_u32 v{t}, v{t+1}, 4, v{t}          ; + h*16
    v_bfe_u32 v{t+1}, v255, 4, 1
    v_lshl_add_u32 v{VA+1}, v{t+1}, 8, v{t}
    v_lshl_add_u32 v{VA+2}, v{t+1}, 3, v{t}
    ''')
    if typ == 'O': k(f'v_add_u32 v{VA+1}, 1024, v{VA+1}')
    R = 0
    k(f's_mov_b32 s39, 0x40000\ns_nop 0\n{name}_{typ}_poll:')
    k('s_mov_b32 s35, s37')
    for c in range(16):
        k(f'buffer_load_dwordx2 v[{R+2*c}:{R+2*c+1}], v{VA+3}, s[{S_WS}:{S_WS+3}], s35 offen sc1')
        if c < 15: k('s_add_u32 s35, s35, 16384')
    k('s_waitcnt vmcnt(0)')
    k(f'v_max3_u32 v{t}, v{R}, v{R+1}, v{R+2}')
    for c in range(3, 31, 2): k(f'v_max3_u32 v{t}, v{t}, v{R+c}, v{R+c+1}')
    k(f'''v_max_u32 v{t}, v{t}, v{R+31}
    v_cmp_eq_u32 vcc, -1, v{t}
    s_sub_u32 s39, s39, 1
    s_cbranch_scc1 {name}_{typ}_go
    s_cbranch_vccnz {name}_{typ}_poll
    {name}_{typ}_go:''')
    stamp(k, K.opt, 5, S_WS, 250)
    for st in (8, 4, 2, 1):
        for c in range(st): k(f'v_pk_add_f32 v[{R+2*c}:{R+2*c+1}], v[{R+2*c}:{R+2*c+1}], v[{R+2*(c+st)}:{R+2*(c+st)+1}]')
    ln_finish(k, R, R + 1, 1792, t)
    k(f'''v_mul_f32 v{R}, v{R}, v{R+1}
    v_mov_b32 v{VS}, v{R+1}
    v_mov_b32 v{VS+4}, v{R+1}
    v_sub_f32 v{VS+1}, 0, v{R}
    v_sub_f32 v{VS+5}, 0, v{R}
    s_nop 1
    v_permlane32_swap_b32 v{VS}, v{VS+4}
    v_permlane32_swap_b32 v{VS+1}, v{VS+5}
    v_mov_b32 v{VS+2}, v{VS}
    v_mov_b32 v{VS+3}, v{VS+1}
    v_mov_b32 v{VS+6}, v{VS+4}
    v_mov_b32 v{VS+7}, v{VS+5}
    s_nop 0
    v_permlane16_swap_b32 v{VS}, v{VS+2}
    v_permlane16_swap_b32 v{VS+1}, v{VS+3}
    v_permlane16_swap_b32 v{VS+4}, v{VS+6}
    v_permlane16_swap_b32 v{VS+5}, v{VS+7}
    ''')
    for (ja, jb, off, hb) in G:
        for rb in range(4):
            regs = [acc(ja, rb)] + ([acc(jb, rb)] if jb is not None else [])
            c = VS + 2 * rb
            for p in pairs(regs):
                k(f'v_pk_fma_f32 v[{p}:{p+1}], v[{p}:{p+1}], v[{c}:{c+1}], v[{c}:{c+1}] op_sel:[0,0,1] op_sel_hi:[1,0,1]')
        for rb in range(4):
            pack(k, acc(ja, rb), acc(jb, rb) if jb is not None else None)
        for rb in range(4):
            a = acc(ja, rb)
            if jb is not None:
                if rb == 0: k('s_nop 0')
                k(f'v_permlane16_swap_b32 v{a}, v{a+2}\nv_permlane16_swap_b32 v{a+1}, v{a+3}')
                k(f'buffer_store_dwordx4 v[{a}:{a+3}], v{VA+1}, s[{S_WS}:{S_WS+3}], s{SB+rb} offen offset:{off}')
            else:
                k(f'buffer_store_dwordx2 v[{a}:{a+1}], v{VA+2}, s[{S_WS}:{S_WS+3}], s{SB+rb} offen offset:{off + 256*hb}')
    k(f'{name}_{typ}_done:')
```

```python
from core128 import *
S_WS, S_SP, S_B = 4, 8, 12
S_WAVE, S_AO, S_BO, S_TB, S_FB, S_IT = 21, 22, 23, 24, 25, 26
V_AD, V_BD, V_AR, V_BR = V0, V0 + 1, V0 + 5, V0 + 7
V_Z = 144
V_BIAS = 176
V_L16 = 180; V_T = 182; V_LANE = 191

class G3(Core):
    def a_dma(self, st, i): return f'buffer_load_dwordx4 v{V_AD}, s[{S_WS}:{S_WS+3}], s{S_AO} offen offset:{i*1024} lds'
    def b_dma(self, st, i): return f'buffer_load_dwordx4 v{V_BD+i}, s[{S_SP}:{S_SP+3}], s{S_BO} offen offset:{i*1024} lds'
    def inc_a(self): return [('i', f's_add_u32 s{S_AO}, s{S_AO}, {4*57344}')]
    def inc_b(self): return [('i', f's_add_u32 s{S_BO}, s{S_BO}, 128')]
    def a_read(self, st, kk, j):
        r = FA(kk, j); h = (st >> 1) & 1
        return [f'ds_read_b64_tr_b16 v[{r+2*t}:{r+2*t+1}], v{V_AR+h} offset:{(st & 1)*STG + A_OFF + kk*8192 + (j >> 1)*1024 + (2*t + (j & 1))*256}' for t in range(2)]
    def b_read(self, st, kk, j):
        r = FB(kk, j); h = (st >> 1) & 1
        return f'ds_read_b128 v[{r}:{r+3}], v{V_BR + 2*h + kk} offset:{(st & 1)*STG + B_OFF + j*2048}'

def side(k, name, opt, head=24, sc=""):
    L = V_L16
    k(f'''
    s_mul_i32 s30, s{head}, 6144
    s_add_u32 s30, s30, {WS_KVP}
    ''')
    for half in range(2):
        for r in range(4):
            for b in range(6):
                d = 24 + (r * 6 + b) * 4
                k(f'buffer_load_dwordx4 v[{d}:{d+3}], v{L}, s[{S_WS}:{S_WS+3}], s30 offen offset:{(b & 3)*1024}' if b < 4 else
                  f'buffer_load_dwordx4 v[{d}:{d+3}], v{L+1}, s[{S_WS}:{S_WS+3}], s30 offen offset:{(b & 3)*1024}')
            k(f's_add_u32 s30, s30, {32*6144}')
        for r in range(4):
            k(f's_waitcnt vmcnt({18 - 6*r})')
            for p in range(0, 24, 2):
                d = 24 + r * 24 + p
                if half == 0 and r == 0: k(f'v_mov_b32 v{p}, v{d}\nv_mov_b32 v{p+1}, v{d+1}')
                else: k(f'v_pk_add_f32 v[{p}:{p+1}], v[{p}:{p+1}], v[{d}:{d+1}]')
    for eb in range(3):
        a, b = eb * 4, 12 + eb * 4
        k(f'''v_cvt_pk_bf16_f32 v{a}, v{a}, v{a+1}
        v_cvt_pk_bf16_f32 v{a+1}, v{a+2}, v{a+3}
        v_cvt_pk_bf16_f32 v{a+2}, v{b}, v{b+1}
        v_cvt_pk_bf16_f32 v{a+3}, v{b+2}, v{b+3}''')
    k(f'''
    s_lshl_b32 s30, s{S_WAVE}, 20
    s_lshl_b32 s31, s{head}, 10
    s_add_u32 s30, s30, s31
    s_add_u32 s31, s30, {WS_O}
    s_add_u32 s30, s30, {WS_PQ}
    ''')
    NB = 8
    def P(bt, n): return 16 + (bt & 1) * 32 + n * 4
    def loads(bt):
        for n in range(NB):
            k(f'buffer_load_dwordx4 v[{P(bt,n)}:{P(bt,n)+3}], v{L}, s[{S_WS}:{S_WS+3}], s30 offen\ns_add_u32 s30, s30, 32768')
    loads(0)
    for bt in range(4):
        if bt < 3: loads(bt + 1)
        nst = 0 if bt == 0 else NB
        k(f's_waitcnt vmcnt({nst + (NB if bt < 3 else 0)})')
        for n in range(NB):
            d = 80 + n * 12; p = P(bt, n)
            for eb in range(3):
                k(f'v_mfma_f32_16x16x32_bf16 v[{d+4*eb}:{d+4*eb+3}], v[{4*eb}:{4*eb+3}], v[{p}:{p+3}], 0')
        k('s_nop 7')
        for n in range(NB): k(f'v_add_f32 v{80+n*12+8}, {f2u(1e-6):#x}, v{80+n*12+8}')
        for n in range(NB): k(f'v_rcp_f32 v{80+n*12+8}, v{80+n*12+8}')
        for n in range(NB):
            d = 80 + n * 12
            for o in range(0, 8, 2):
                k(f'v_pk_mul_f32 v[{d+o}:{d+o+1}], v[{d+o}:{d+o+1}], v[{d+8}:{d+9}] op_sel_hi:[1,0]')
            for o in range(4): k(f'v_cvt_pk_bf16_f32 v{d+o}, v{d+2*o}, v{d+2*o+1}')
            k(f'buffer_store_dwordx4 v[{d}:{d+3}], v{L}, s[{S_WS}:{S_WS+3}], s31 offen{sc}\ns_add_u32 s31, s31, 32768')
        k('s_nop 1')


def g3_setup(k, g):
    t = V_T
    k(f'''
    s_lshl_b32 s{g.S_LB}, s{S_WAVE}, 12
    s_mul_i32 s32, s{S_WAVE}, 57344
    s_lshl_b32 s33, s{S_FB}, 12
    s_add_u32 s32, s32, s33
    v_add_u32 v{V_AD}, s32, v{V_L16}
    s_mov_b32 s{S_AO}, {WS_Z2}
    s_mov_b32 s{S_BO}, 0
    ; B dma: (t0 + 32w + 8i + (l>>3))*4096 + ((l&7)^(l>>3))*16 - i*1024
    v_lshrrev_b32 v{t}, 3, v{V_LANE}
    v_and_b32 v{t+1}, 7, v{V_LANE}
    v_xor_b32 v{t+1}, v{t}, v{t+1}
    v_lshlrev_b32 v{t+1}, 4, v{t+1}
    v_lshl_add_u32 v{t+1}, v{t}, 12, v{t+1}
    s_lshl_b32 s32, s{S_TB}, 19
    s_lshl_b32 s33, s{S_WAVE}, 17
    s_add_u32 s32, s32, s33
    v_add_u32 v{V_BD}, s32, v{t+1}
    v_add_u32 v{V_BD+1}, {1*31744}, v{V_BD}
    v_add_u32 v{V_BD+2}, {2*31744}, v{V_BD}
    v_add_u32 v{V_BD+3}, {3*31744}, v{V_BD}
    s_waitcnt lgkmcnt(0)
    ''')
def g3_mid():
    t = V_T
    return f'''
    v_lshrrev_b32 v{t}, 5, v{V_LANE}
    v_lshlrev_b32 v{t}, 12, v{t}
    v_bfe_u32 v{t+1}, v{V_LANE}, 2, 3
    v_lshl_add_u32 v{t}, v{t+1}, 5, v{t}
    v_and_b32 v{t+1}, 3, v{V_LANE}
    v_lshl_add_u32 v{t}, v{t+1}, 3, v{t}
    s_lshr_b32 s32, s{S_WAVE}, 1
    s_lshl_b32 s32, s32, 11
    v_add_u32 v{V_AR}, s32, v{t}
    v_add_u32 v{V_AR+1}, 0x10000, v{V_AR}
    v_and_b32 v{t}, 15, v{V_LANE}
    v_lshrrev_b32 v{t+1}, 4, v{V_LANE}
    v_and_b32 v{t+2}, 7, v{V_LANE}
    v_xor_b32 v{t+1}, v{t+1}, v{t+2}
    v_lshlrev_b32 v{t+1}, 4, v{t+1}
    v_lshl_add_u32 v{t+1}, v{t}, 7, v{t+1}
    s_and_b32 s33, s{S_WAVE}, 1
    s_lshl_b32 s32, s33, 13
    v_add_u32 v{V_BR}, s32, v{t+1}
    v_xor_b32 v{V_BR+1}, 64, v{V_BR}
    v_add_u32 v{V_BR+2}, 0x10000, v{V_BR}
    v_add_u32 v{V_BR+3}, 0x10000, v{V_BR+1}
    v_lshlrev_b32 v{t+3}, 1, v{t}
    s_lshl_b32 s32, s{S_TB}, 8
    s_lshl_b32 s34, s33, 7
    s_add_u32 s40, s32, s34
    s_lshl_b32 s32, s{S_TB}, 3
    s_lshl_b32 s34, s33, 2
    s_add_u32 s32, s32, s34
    s_mul_i32 s32, s32, 56
    s_lshl_b32 s34, s{S_FB}, 2
    s_add_u32 s32, s32, s34
    s_and_b32 s34, s{S_WAVE}, 2
    s_add_u32 s32, s32, s34
    s_lshl_b32 s32, s32, 10
    s_add_u32 s44, s32, {WS_Z1}
    s_add_u32 s45, s44, 57344
    s_add_u32 s46, s45, 57344
    s_add_u32 s47, s46, 57344
    '''
def g3_zloads():
    t = V_T; zl = []
    for jb in range(4):
        zl.append(('vm', f'buffer_load_ushort v{V_BIAS+jb}, v{t+3}, s[{S_B}:{S_B+3}], s40 offen offset:{jb*32}', 'Z'))
    for jb in range(4):
        for P in range(2):
            z = V_Z + (jb * 2 + P) * 4
            zl.append(('vm', f'buffer_load_dwordx4 v[{z}:{z+3}], v{V_L16}, s[{S_WS}:{S_WS+3}], s{44+jb} offen offset:{P*1024}', 'Z'))
    return zl
def g3_epi(sc):
    o = []; I = lambda x: o.append(('i', x))
    for jb in range(4): I(f's_add_u32 s{44+jb}, s{44+jb}, {WS_U - WS_Z1}')
    o.append(('wv', 'Z'))
    for jb in range(4): I(f'v_lshlrev_b32 v{V_BIAS+jb}, 16, v{V_BIAS+jb}')
    for jb in range(4):
        bp = V_BIAS + (jb & 2); sel = jb & 1
        for P in range(2):
            z = V_Z + (jb * 2 + P) * 4; T = 64 + ((jb * 2 + P) & 1) * 8
            regs = [acc(2 * P, jb), acc(2 * P, jb) + 2, acc(2 * P + 1, jb), acc(2 * P + 1, jb) + 2]
            for n, p in enumerate(regs):
                I(f'v_lshlrev_b32 v{T+2*n}, 16, v{z+n}\nv_and_b32 v{T+2*n+1}, 0xffff0000, v{z+n}')
                I(f'v_pk_add_f32 v[{p}:{p+1}], v[{p}:{p+1}], v[{bp}:{bp+1}] op_sel:[0,{sel}] op_sel_hi:[1,{sel}]')
            for n, p in enumerate(regs):
                I(f'v_pk_mul_f32 v[{p}:{p+1}], v[{p}:{p+1}], v[{T+2*n}:{T+2*n+1}]')
            for n, p in enumerate(regs):
                I(f'v_cvt_pk_bf16_f32 v{z+n}, v{p}, v{p+1}')
            o.append(('vm', f'buffer_store_dwordx4 v[{z}:{z+3}], v{V_L16}, s[{S_WS}:{S_WS+3}], s{44+jb} offen offset:{P*1024}{sc}', 'U'))
    return o

def make_k2(name, opt):
    k = Kernel(name, 256, 256, 4 * STG, vgpr=192, sgpr=96)
    g = G3(); t = V_T
    if opt.get('st2'): g.st2 = 190
    k(f'''
    s_cmp_ge_u32 s2, 256
    s_cbranch_scc1 {name}_end
    s_load_dwordx2 s[{S_WS}:{S_WS+1}], s[0:1], 80
    s_load_dwordx2 s[{S_SP}:{S_SP+1}], s[0:1], 40
    s_load_dwordx2 s[{S_B}:{S_B+1}], s[0:1], 48
    v_lshrrev_b32 v1, 6, v0
    v_and_b32 v{V_LANE}, 63, v0
    ''')
    srd(k, S_WS, 0, 0x10000000)
    k(f'v_readfirstlane_b32 s{S_WAVE}, v1')
    srd(k, S_SP, 0, 8 << 20); srd(k, S_B, 0, 4096)
    k(f'''
    v_lshlrev_b32 v{V_L16}, 4, v{V_LANE}
    v_add_u32 v{V_L16+1}, 4096, v{V_L16}
    s_lshr_b32 s30, s2, 3                   ; idx
    s_and_b32 s31, s2, 7                    ; xcd
    s_cmp_lt_u32 s30, 28
    s_cbranch_scc1 {name}_main
    s_lshl_b32 s31, s31, 2
    s_add_u32 s24, s31, s30
    s_sub_u32 s24, s24, 28
    s_waitcnt lgkmcnt(0)
    ''')
    stamp(k, opt, 0, S_WS, t)
    if opt.get('stamp'): k('s_waitcnt vmcnt(0)')
    side(k, name, opt)
    stamp(k, opt, 3, S_WS, t)
    k(f'''s_endpgm
    {name}_main:
    s_and_b32 s32, s31, 3
    s_lshl_b32 s32, s32, 2
    s_and_b32 s33, s30, 3
    s_add_u32 s{S_TB}, s32, s33
    s_lshr_b32 s32, s31, 2
    s_mul_i32 s32, s32, 7
    s_lshr_b32 s33, s30, 2
    s_add_u32 s{S_FB}, s32, s33
    s_lshl_b32 s{g.S_LB}, s{S_WAVE}, 12
    s_mul_i32 s32, s{S_WAVE}, 57344
    s_lshl_b32 s33, s{S_FB}, 12
    s_add_u32 s32, s32, s33
    v_add_u32 v{V_AD}, s32, v{V_L16}
    s_mov_b32 s{S_AO}, {WS_Z2}
    s_mov_b32 s{S_BO}, 0
    ; B dma: (t0 + 32w + 8i + (l>>3))*4096 + ((l&7)^(l>>3))*16 - i*1024
    v_lshrrev_b32 v{t}, 3, v{V_LANE}
    v_and_b32 v{t+1}, 7, v{V_LANE}
    v_xor_b32 v{t+1}, v{t}, v{t+1}
    v_lshlrev_b32 v{t+1}, 4, v{t+1}
    v_lshl_add_u32 v{t+1}, v{t}, 12, v{t+1}
    s_lshl_b32 s32, s{S_TB}, 19
    s_lshl_b32 s33, s{S_WAVE}, 17
    s_add_u32 s32, s32, s33
    v_add_u32 v{V_BD}, s32, v{t+1}
    v_add_u32 v{V_BD+1}, {1*31744}, v{V_BD}
    v_add_u32 v{V_BD+2}, {2*31744}, v{V_BD}
    v_add_u32 v{V_BD+3}, {3*31744}, v{V_BD}
    s_waitcnt lgkmcnt(0)
    ''')
    stamp(k, opt, 0, S_WS, t)
    if opt.get('stamp'): k('s_waitcnt vmcnt(0)')
    mid = [('i', f'''
    v_lshrrev_b32 v{t}, 5, v{V_LANE}
    v_lshlrev_b32 v{t}, 12, v{t}
    v_bfe_u32 v{t+1}, v{V_LANE}, 2, 3
    v_lshl_add_u32 v{t}, v{t+1}, 5, v{t}
    v_and_b32 v{t+1}, 3, v{V_LANE}
    v_lshl_add_u32 v{t}, v{t+1}, 3, v{t}
    s_lshr_b32 s32, s{S_WAVE}, 1
    s_lshl_b32 s32, s32, 11
    v_add_u32 v{V_AR}, s32, v{t}
    v_add_u32 v{V_AR+1}, 0x10000, v{V_AR}
    v_and_b32 v{t}, 15, v{V_LANE}
    v_lshrrev_b32 v{t+1}, 4, v{V_LANE}
    v_and_b32 v{t+2}, 7, v{V_LANE}
    v_xor_b32 v{t+1}, v{t+1}, v{t+2}
    v_lshlrev_b32 v{t+1}, 4, v{t+1}
    v_lshl_add_u32 v{t+1}, v{t}, 7, v{t+1}
    s_and_b32 s33, s{S_WAVE}, 1
    s_lshl_b32 s32, s33, 13
    v_add_u32 v{V_BR}, s32, v{t+1}
    v_xor_b32 v{V_BR+1}, 64, v{V_BR}
    v_add_u32 v{V_BR+2}, 0x10000, v{V_BR}
    v_add_u32 v{V_BR+3}, 0x10000, v{V_BR+1}
    v_lshlrev_b32 v{t+3}, 1, v{t}
    s_lshl_b32 s32, s{S_TB}, 8
    s_lshl_b32 s34, s33, 7
    s_add_u32 s40, s32, s34
    s_lshl_b32 s32, s{S_TB}, 3
    s_lshl_b32 s34, s33, 2
    s_add_u32 s32, s32, s34
    s_mul_i32 s32, s32, 56
    s_lshl_b32 s34, s{S_FB}, 2
    s_add_u32 s32, s32, s34
    s_and_b32 s34, s{S_WAVE}, 2
    s_add_u32 s32, s32, s34
    s_lshl_b32 s32, s32, 10
    s_add_u32 s44, s32, {WS_Z1}
    s_add_u32 s45, s44, 57344
    s_add_u32 s46, s45, 57344
    s_add_u32 s47, s46, 57344
    ''')]
    ex = {}
    zl = []
    for jb in range(4):
        zl.append(('vm', f'buffer_load_ushort v{V_BIAS+jb}, v{t+3}, s[{S_B}:{S_B+3}], s40 offen offset:{jb*32}', 'Z'))
    for jb in range(4):
        for P in range(2):
            z = V_Z + (jb * 2 + P) * 4
            zl.append(('vm', f'buffer_load_dwordx4 v[{z}:{z+3}], v{V_L16}, s[{S_WS}:{S_WS+3}], s{44+jb} offen offset:{P*1024}', 'Z'))
    ex[29] = {2 * n + 1: [zl[n]] for n in range(12)}
    q = Q()
    g.run(k, 32, q, mid, ex, S_IT, (lambda: stamp(k, opt, 1, S_WS, t + 4)) if opt.get('stamp') else None)
    stamp(k, opt, 2, S_WS, t + 4)
    g.st2_out(k, opt, S_WS, V_L16)
    for jb in range(4): k(f's_add_u32 s{44+jb}, s{44+jb}, {WS_U - WS_Z1}')
    k('s_waitcnt vmcnt(0)')
    for jb in range(4): k(f'v_lshlrev_b32 v{V_BIAS+jb}, 16, v{V_BIAS+jb}')
    for jb in range(4):
        bp = V_BIAS + (jb & 2); sel = jb & 1
        for P in range(2):
            z = V_Z + (jb * 2 + P) * 4; T = 64 + ((jb * 2 + P) & 1) * 8
            regs = [acc(2 * P, jb), acc(2 * P, jb) + 2, acc(2 * P + 1, jb), acc(2 * P + 1, jb) + 2]
            for n, p in enumerate(regs):
                k(f'v_lshlrev_b32 v{T+2*n}, 16, v{z+n}\nv_and_b32 v{T+2*n+1}, 0xffff0000, v{z+n}')
                k(f'v_pk_add_f32 v[{p}:{p+1}], v[{p}:{p+1}], v[{bp}:{bp+1}] op_sel:[0,{sel}] op_sel_hi:[1,{sel}]')
            for n, p in enumerate(regs):
                k(f'v_pk_mul_f32 v[{p}:{p+1}], v[{p}:{p+1}], v[{T+2*n}:{T+2*n+1}]')
            for n, p in enumerate(regs):
                k(f'v_cvt_pk_bf16_f32 v{z+n}, v{p}, v{p+1}')
            k(f'buffer_store_dwordx4 v[{z}:{z+3}], v{V_L16}, s[{S_WS}:{S_WS+3}], s{44+jb} offen offset:{P*1024}')
    stamp(k, opt, 3, S_WS, t + 4)
    k(f'{name}_end:\ns_endpgm')
    return k
```

```python
from core128 import *
import k2
from k2 import G3, side, S_WS, S_SP, S_B, S_WAVE, S_AO, S_BO, S_TB, S_FB, S_IT, V_AD, V_BD, V_AR, V_BR, V_Z, V_BIAS, V_L16, V_T, V_LANE
S_X, S_NB, S_WO, S_W2, S_OUT = 16, 27, 48, 52, 56
S_WOFF, S_B0, S_FW, S_FU, S_FO, S_M0, S_XB, S_U0 = 60, 61, 63, 64, 65, 66, 68, 70
V_WA, V_WR, V_OA, V_FL, V_PO, V_PU, V_ONE, V_ZERO = 192, 208, 202, 203, 204, 205, 206, 207
RW = 16
V_X = 96
LOG2E = 1.4426950408889634
N2, N4 = 16, 28
NB = N2 + N4
def slot_base(s): return 8192 * s
L_Z = 131072
S_ZM, S_ZO, V_ZR = 72, 73, 216
def accB(st, ja, jb): return (0 if st < N2 else 32) + (ja * 2 + jb) * 4
def bfr(st, kk, jb): return (st & 7) * 16 + kk * 8 + jb * 4

def w_dma(st):
    sr = S_WO if st < N2 else S_W2
    ops = [('i', f's_add_u32 m0, s{S_M0}, {slot_base(st % RW)}')]
    if st == N2: ops.append(('i', f's_mov_b32 s{S_WOFF}, 0'))
    else: ops.append(('i', 's_nop 0'))
    ops += [('vm', f'buffer_load_dwordx4 v{V_WA+i}, s[{sr}:{sr+3}], s{S_WOFF} offen offset:{i*1024} lds', ('W', st)) for i in range(2)]
    ops.append(('i', f's_add_u32 s{S_WOFF}, s{S_WOFF}, {64*2048}'))
    return ops
def b_load(st):
    ops = []
    if st == N2: ops += [('i', f's_mov_b32 s{S_B0}, s{S_U0}\ns_mov_b32 s{S_B0+1}, s{S_U0+1}')]
    for jb in range(2):
        for kk in range(2):
            r = bfr(st, kk, jb)
            ops.append(('vm', f'buffer_load_dwordx4 a[{r}:{r+3}], v{V_L16}, s[{S_WS}:{S_WS+3}], s{S_B0+jb} offen offset:{kk*1024}', ('B', st)))
        ops.append(('i', f's_add_u32 s{S_B0+jb}, s{S_B0+jb}, 2048'))
    return ops
def w_read(st, kk):
    b = slot_base(st % RW); ops = []
    for ja in range(4):
        r = FA(kk, ja)
        for t in range(2):
            ops.append(('lds', f'ds_read_b64_tr_b16 v[{r+2*t}:{r+2*t+1}], v{V_WR + (b >> 16)*4 + ja} offset:{(b & 65535) + (2*kk + t)*2048}', ('A', st, kk, ja)))
    return ops
def poll(name, lab, va, sb):
    ld = f'buffer_load_dword v{V_FL}, v{va}, s[{S_WS}:{S_WS+3}], s{sb} offen sc1'
    chk = f'''v_cmp_eq_u32 vcc, 0, v{V_FL}
    s_mov_b32 s36, 0x40000
    s_nop 0
    s_cbranch_vccz {name}_{lab}_got
    {name}_{lab}_spin:
    {ld}
    s_waitcnt vmcnt(0)
    v_cmp_eq_u32 vcc, 0, v{V_FL}
    s_sub_u32 s36, s36, 1
    s_cbranch_scc1 {name}_{lab}_got
    s_cbranch_vccz {name}_{lab}_got
    s_sleep 2
    s_branch {name}_{lab}_spin
    {name}_{lab}_got:'''
    return ('vm', ld, 'F' + lab), [('wv', 'F' + lab), ('i', chk)]

class Jobs:
    def __init__(self, PS, wfirst):
        self.w = 0; self.b = 0; self.PS = PS; self.pend = []; self.wfirst = wfirst
    def next(self, wmax, bmax):
        if not self.pend:
            cw = self.w < NB and self.w <= wmax; cb = self.b < NB and self.b <= bmax
            if cw and (not cb or self.w <= self.b + self.wfirst):
                D = w_dma(self.w); self.w += 1
                self.pend = [([D[0]] + ([D[1]] if 'nop' not in D[1][1] else []), D[2], []), ([], D[3], [D[4]])]
            elif cb:
                L = b_load(self.b); self.b += 1
                p = [L.pop(0)] if L[0][0] == 'i' else []
                self.pend = [(p, L[0], []), ([], L[1], [L[2]]), ([], L[3], []), ([], L[4], [L[5]])]
            else: return None
        return self.pend.pop(0)

def stageB(st, J, extra, st2, POS):
    gaps = [[] for _ in range(16)]
    for n, r in enumerate(w_read(st, 1)): gaps[n].append(r)
    if st + 1 < NB:
        gaps[8] += [('wlv', [('A', st, 1, 3)], ('W', st + 1)), ('i', 's_barrier')]
        if st2 is not None:
            gaps[8].append(('i', f's_mov_b32 s87, m0\ns_mov_b32 m0, s86\ns_add_u32 s86, s86, 1\nv_writelane_b32 v{st2}, s84, m0\ns_memtime s[84:85]\ns_mov_b32 m0, s87'))
        R = w_read(st + 1, 0)
        for p, r in zip((8, 9, 10, 11, 12, 13, 14, 15), R): gaps[p].append(r)
    for p in POS:
        bmax = st + 7 if st >= J.PS else min(st + 7, N2 - 1)
        j = J.next(st + RW - (0 if p > 9 else 1), bmax)
        if j is None: continue
        gaps[p - 1] += j[0]; gaps[p] += [j[1]] + j[2]
    assert J.w > min(st + 2, NB - 1) and J.b > min(st + 1, NB - 1), (st, J.w, J.b)
    ops = []; seen = set()
    for m in range(16):
        kk = m >> 3; ja = (m >> 1) & 3; jb = m & 1
        if ja & 1: jb = 1 - jb
        if extra and ('pre', m) in extra: ops += extra[('pre', m)]
        if m == 0: ops.append(('wlv', [('A', st, 0, 0)], ('B', st)))
        elif (kk, ja) not in seen: ops.append(('wl', [('A', st, kk, ja)]))
        seen.add((kk, ja))
        d = accB(st, ja, jb); a = FA(kk, ja); b = bfr(st, kk, jb)
        c = '0' if (st in (0, N2) and kk == 0) else f'v[{d}:{d+3}]'
        ops.append(('i', f'v_mfma_f32_16x16x32_bf16 v[{d}:{d+3}], v[{a}:{a+3}], a[{b}:{b+3}], {c}'))
        ops += gaps[m]
        if extra and m in extra: ops += extra[m]
    return ops

def make_k23(name, opt):
    k = Kernel(name, 256, 256, 163840, vgpr=256 + 128, sgpr=96, accum=256)
    g = G3(); t = V_T; PS = opt.get('PS', 12); NPRE = opt.get('NPRE', 28); NEPI = opt.get('NEPI', 6)
    if opt.get('st2'): g.st2 = 190
    k(f'''
    s_cmp_ge_u32 s2, 256
    s_cbranch_scc1 {name}_end
    s_load_dwordx2 s[{S_WS}:{S_WS+1}], s[0:1], 80
    s_load_dwordx2 s[{S_SP}:{S_SP+1}], s[0:1], 40
    s_load_dwordx2 s[{S_B}:{S_B+1}], s[0:1], 48
    s_load_dwordx2 s[{S_X}:{S_X+1}], s[0:1], 0
    s_load_dwordx2 s[{S_WO}:{S_WO+1}], s[0:1], 16
    s_load_dwordx2 s[{S_W2}:{S_W2+1}], s[0:1], 56
    s_load_dwordx2 s[{S_OUT}:{S_OUT+1}], s[0:1], 64
    v_lshrrev_b32 v1, 6, v0
    v_and_b32 v{V_LANE}, 63, v0
    ''')
    srd(k, S_WS, 0, 0x10000000)
    k(f'v_readfirstlane_b32 s{S_WAVE}, v1')
    srd(k, S_SP, 0, 8 << 20); srd(k, S_B, 0, 4096); srd(k, S_X, 0, 4 << 20); srd(k, S_OUT, 0, 4 << 20)
    srd(k, S_WO, 0, 1024 * 2048); srd(k, S_W2, 0, 1792 * 2048)
    k(f'''
    v_lshlrev_b32 v{V_L16}, 4, v{V_LANE}
    v_add_u32 v{V_L16+1}, 4096, v{V_L16}
    s_lshr_b32 s30, s2, 3                   ; idx
    s_and_b32 s31, s2, 7                    ; xcd
    s_and_b32 s32, s31, 3
    s_lshl_b32 s32, s32, 2
    s_and_b32 s33, s30, 3
    s_add_u32 s{S_TB}, s32, s33
    s_lshr_b32 s32, s31, 2
    s_lshr_b32 s33, s30, 2
    s_lshl_b32 s34, s32, 3
    s_xor_b32 s35, s33, {opt.get('nbx', 0)}
    s_add_u32 s{S_NB}, s34, s35
    s_mul_i32 s32, s32, 7
    s_add_u32 s{S_FB}, s32, s33
    ''')
    setB = f'''
    v_lshrrev_b32 v{t}, 3, v{V_LANE}
    v_bfe_u32 v{t+1}, v{V_LANE}, 4, 2
    v_bfe_u32 v{t+2}, v{V_LANE}, 1, 2
    v_xor_b32 v{t+1}, v{t+1}, v{t+2}
    v_and_b32 v{t+2}, 1, v{V_LANE}
    v_lshlrev_b32 v{t+2}, 4, v{t+2}
    v_lshl_add_u32 v{t+1}, v{t+1}, 5, v{t+2}
    v_lshl_add_u32 v{t+1}, v{t}, 11, v{t+1}
    s_lshl_b32 s32, s{S_WAVE}, 15
    s_lshl_b32 s33, s{S_NB}, 7
    s_add_u32 s32, s32, s33
    v_add_u32 v{V_WA}, s32, v{t+1}
    v_add_u32 v{V_WA+1}, {16384 - 1024}, v{V_WA}
    s_mov_b32 s{S_WOFF}, 0
    s_lshl_b32 s{S_M0}, s{S_WAVE}, 11
    '''
    if opt.get('wlin'): setB += f'''
    s_lshl_b32 s33, s{S_NB}, 13
    s_add_u32 s32, s33, s{S_M0}
    v_add_u32 v{V_WA}, s32, v{V_L16}
    v_mov_b32 v{V_WA+1}, v{V_WA}
    '''
    setB += f'''
    v_lshrrev_b32 v{t}, 2, v{V_LANE}
    v_bfe_u32 v{t+1}, v{V_LANE}, 3, 2
    v_and_b32 v{t+2}, 3, v{V_LANE}
    v_lshlrev_b32 v{t+2}, 3, v{t+2}
    v_lshl_add_u32 v{t+2}, v{t}, 7, v{t+2}
    '''
    for j in range(4):
        setB += f'''v_xor_b32 v{t+4}, {j}, v{t+1}
        v_lshl_add_u32 v{V_WR+j}, v{t+4}, 5, v{t+2}
        v_add_u32 v{V_WR+4+j}, 0x10000, v{V_WR+j}
        '''
    setB += f'''
    s_lshl_b32 s32, s{S_TB}, 3
    s_lshl_b32 s33, s{S_WAVE}, 1
    s_add_u32 s32, s32, s33
    s_lshl_b32 s33, s32, 15
    s_add_u32 s{S_B0}, s33, {WS_O}
    s_add_u32 s{S_B0+1}, s{S_B0}, 32768
    s_mul_i32 s34, s32, 57344
    s_add_u32 s{S_U0}, s34, {WS_U}
    s_add_u32 s{S_U0+1}, s{S_U0}, 57344
    s_lshl_b32 s34, s{S_NB}, 7
    s_add_u32 s{S_XB}, s33, s34
    s_add_u32 s{S_XB+1}, s{S_XB}, 32768
    v_and_b32 v{t}, 15, v{V_LANE}
    v_bfe_u32 v{t+1}, v{V_LANE}, 4, 1
    v_lshlrev_b32 v{t+1}, 5, v{t+1}
    v_lshl_add_u32 v{t}, v{t}, 11, v{t+1}
    v_lshrrev_b32 v{t+1}, 5, v{V_LANE}
    v_lshl_add_u32 v{V_OA}, v{t+1}, 4, v{t}
    s_lshl_b32 s{S_ZM}, s{S_WAVE}, 13
    s_add_u32 s{S_ZM}, s{S_ZM}, {L_Z}
    v_add_u32 v{V_ZR}, s{S_ZM}, v{V_L16}
    ; flags
    v_min_u32 v{V_PO}, 31, v{V_LANE}
    v_lshlrev_b32 v{V_PO}, 2, v{V_PO}
    v_min_u32 v{V_PU}, 27, v{V_LANE}
    v_lshlrev_b32 v{V_PU}, 2, v{V_PU}
    v_mov_b32 v{V_ONE}, 1
    v_mov_b32 v{V_ZERO}, 0
    s_lshr_b32 s32, s{S_TB}, 2
    s_lshl_b32 s32, s32, 7
    s_add_u32 s{S_FO}, s32, {WS_FLAG + 4096}
    s_lshl_b32 s32, s{S_TB}, 8
    s_add_u32 s32, s32, {WS_FLAG}
    s_lshr_b32 s33, s{S_WAVE}, 1
    s_lshl_b32 s34, s33, 7
    s_add_u32 s{S_FU}, s32, s34
    s_lshl_b32 s33, s33, 2
    s_add_u32 s32, s32, s33
    s_and_b32 s33, s{S_WAVE}, 1
    s_lshl_b32 s33, s33, 7
    s_add_u32 s32, s32, s33
    s_lshl_b32 s33, s{S_FB}, 3
    s_add_u32 s{S_FW}, s32, s33
    '''
    flag_store = lambda s: f's_mov_b64 exec, 1\nbuffer_store_dword v{V_ONE}, v{V_ZERO}, s[{S_WS}:{S_WS+3}], s{s} offen sc1\ns_mov_b64 exec, -1'
    J = Jobs(PS, opt.get('WF', 1))
    pre = [J.next(7, 7) for _ in range(NPRE + NEPI)]
    while J.pend: pre.append(J.next(7, 7))
    preB = sum([a + ([('i', 's_nop 0')] if a else []) + [v] + c for a, v, c in pre], [])
    k(f'''s_cmp_lt_u32 s30, 28
    s_cbranch_scc1 {name}_main
    s_lshl_b32 s31, s31, 2
    s_add_u32 s37, s31, s30
    s_sub_u32 s37, s37, 28
    s_waitcnt lgkmcnt(0)
    ''')
    stamp(k, opt, 0, S_WS, t)
    if opt.get('stamp'): k('s_waitcnt vmcnt(0)')
    side(k, name, opt, head=37, sc=opt.get('osc', ' sc1'))
    k(setB)
    k(f'''s_lshl_b32 s32, s{S_WAVE}, 7
    s_lshl_b32 s33, s37, 2
    s_add_u32 s32, s32, s33
    s_add_u32 s32, s32, {WS_FLAG + 4096}
    s_mov_b32 s{S_FW}, {WS_FLAG + 8192}
    s_waitcnt vmcnt(0)''')
    k(flag_store(32))
    stamp(k, opt, 1, S_WS, t + 4)
    ld, chk = poll(name, 'os', V_PO, S_FO)
    tx, _ = resolve([ld] + chk + preB, Q())
    k('\n'.join(tx))
    if g.st2 is not None: k('s_mov_b32 s86, 32\ns_mov_b32 s84, 0')
    stamp(k, opt, 2, S_WS, t + 4)
    k(f's_waitcnt vmcnt(0)\ns_branch {name}_J\n{name}_main:')
    k2.g3_setup(k, g)
    if opt.get('splin'):
        k(f'''s_lshl_b32 s32, s{S_TB}, 14
        s_lshl_b32 s33, s{S_WAVE}, 12
        s_add_u32 s32, s32, s33
        v_add_u32 v{V_BD}, s32, v{V_L16}
        v_mov_b32 v{V_BD+1}, v{V_BD}
        v_mov_b32 v{V_BD+2}, v{V_BD}
        v_mov_b32 v{V_BD+3}, v{V_BD}''')
        g.inc_b = lambda: [('i', f's_add_u32 s{S_BO}, s{S_BO}, 262144')]
    stamp(k, opt, 0, S_WS, t)
    if opt.get('stamp'): k('s_waitcnt vmcnt(0)')
    mid = [('i', setB), ('i', k2.g3_mid()), ('i', f's_mov_b32 s{S_ZO}, s44')]
    zl = k2.g3_zloads()
    ld, chk = poll(name, 'o', V_PO, S_FO)
    ex = {27: {3: [ld]}, 28: {16: chk}, 29: {}, 30: {}, 31: {}}
    for n in range(4): ex[27].setdefault(5 + 2 * n, []).append(zl[n])
    pos = [(28, m) for m in (19, 23, 27, 31)] + [(st, m) for st in (29, 30, 31) for m in (2, 6, 10, 14, 19, 23, 27, 31)]
    for n in range(8):
        ex[31].setdefault(16 + 2 * n, []).append(('lds', f'ds_read_b128 v[{V_Z+4*n}:{V_Z+4*n+3}], v{V_ZR} offset:{n*1024}', 'Zl'))
    zlab = name + '_zskip'
    g.loop_extra = {2: {16: [('i', f'''s_cmp_gt_u32 s{S_IT}, 4
    s_cbranch_scc1 {zlab}
    s_mov_b32 m0, s{S_ZM}
    s_add_u32 s{S_ZM}, s{S_ZM}, 2048
    buffer_load_dwordx4 v{V_L16}, s[{S_WS}:{S_WS+3}], s{S_ZO} offen lds
    buffer_load_dwordx4 v{V_L16}, s[{S_WS}:{S_WS+3}], s{S_ZO} offen offset:1024 lds
    s_add_u32 s{S_ZO}, s{S_ZO}, 57344
    {zlab}:''')]}}
    for (st, m), (a, v, c) in zip(pos, pre[:NPRE]):
        ex[st].setdefault(m - 1, []).extend(a); ex[st].setdefault(m, []).extend([v] + c)
    q = Q()
    g.run(k, 32, q, mid, ex, S_IT, (lambda: stamp(k, opt, 1, S_WS, t + 4)) if opt.get('stamp') else None)
    if opt.get('stamp'): stamp(k, opt, 2, S_WS, t + 4); q.v.append('st')
    epi = []; rest = pre[NPRE:]
    for o in [('wl', 'Zl')] + k2.g3_epi(' sc1'):
        if o[0] == 'vm' and rest:
            a, v, c = rest.pop(0); epi += a + ([('i', 's_nop 0')] if a else []) + [v] + c
        epi.append(o)
    assert not rest
    tx, _ = resolve(epi, q)
    k('\n'.join(tx))
    k(f'{name}_J:')
    if opt.get('stamp'): stamp(k, opt, 3, S_WS, t + 4); q.v.append('st')
    if g.st2 is not None: g.st2_out(k, opt, S_WS, V_L16); q.v.append('st'); k('s_mov_b32 s86, 0')
    ops = [('wv', ('W', 0)), ('i', 's_barrier')] + w_read(0, 0)
    for _ in range(opt.get('NJ', 12)):
        j = J.next(RW - 1, 7)
        if j is None: break
        a, v, c = j; ops += a + ([('i', 's_nop 0')] if a else []) + [v] + c
    ld, chk = poll(name, 'u', V_PU, S_FU)
    exB = {opt.get('FS', 1): {15: [('wv', 'U'), ('vm', flag_store(S_FW), 'FS')]}}
    exB.setdefault(PS - opt.get('FD', 2), {})[2] = [ld]
    exB.setdefault(PS, {})[('pre', 0)] = chk
    xl = [('vm', f'buffer_load_dwordx4 v[{V_X+4*n}:{V_X+4*n+3}], v{V_OA}, s[{S_X}:{S_X+3}], s{S_XB + (n >> 1)} offen offset:{(n & 1)*64}', 'X') for n in range(4)]
    exB[NB - 4] = {2 * n + 1: [xl[n]] for n in range(4)}
    for st in range(NB): ops += stageB(st, J, exB.get(st), g.st2, opt.get('POS', (1, 4, 7, 10, 13, 15)))
    ops.append(('wv', 'X'))
    tx, _ = resolve(ops, q)
    k('\n'.join(tx))
    stamp(k, opt, 4, S_WS, t + 4)
    if g.st2 is not None:
        g.st2_out(k, dict(opt, stamp_slot=3), S_WS, V_L16)
    k(f'v_mov_b32 v{t}, {f2u(-LOG2E):#x}\ns_nop 6')
    for jb in range(2):
        for P in range(2):
            n = jb * 2 + P; a, b = accB(N2, 2 * P, jb), accB(N2, 2 * P + 1, jb)
            T = 112 + (n & 1) * 16; W = T + 8
            H = [a, a + 2, b, b + 2]
            for i, p in enumerate(H): k(f'v_pk_mul_f32 v[{T+2*i}:{T+2*i+1}], v[{p}:{p+1}], v[{t}:{t+1}] op_sel_hi:[1,0]')
            for i in range(8): k(f'v_exp_f32 v{T+i}, v{T+i}')
            for i, p in enumerate(H):
                k(f'v_pk_mul_f32 v[{p}:{p+1}], v[{p}:{p+1}], v[{p-32}:{p-31}]')
                k(f'v_pk_add_f32 v[{T+2*i}:{T+2*i+1}], v[{T+2*i}:{T+2*i+1}], 1.0 op_sel_hi:[1,0]')
            for i in range(8): k(f'v_rcp_f32 v{T+i}, v{T+i}')
            for i, p in enumerate(H):
                k(f'v_lshlrev_b32 v{W+2*i}, 16, v{V_X+4*n+i}')
                k(f'v_pk_mul_f32 v[{p}:{p+1}], v[{p}:{p+1}], v[{T+2*i}:{T+2*i+1}]')
            for i in range(4): k(f'v_and_b32 v{W+2*i+1}, 0xffff0000, v{V_X+4*n+i}')
            for r in range(4): k(f'v_permlane16_swap_b32 v{a+r}, v{b+r}')
            for i, p in enumerate(H): k(f'v_pk_add_f32 v[{p}:{p+1}], v[{p}:{p+1}], v[{W+2*i}:{W+2*i+1}]')
            for i, p in enumerate(H): k(f'v_cvt_pk_bf16_f32 v{V_X+4*n+i}, v{p}, v{p+1}')
            k(f'buffer_store_dwordx4 v[{V_X+4*n}:{V_X+4*n+3}], v{V_OA}, s[{S_OUT}:{S_OUT+3}], s{S_XB+jb} offen offset:{P*64}')
    stamp(k, opt, 5, S_WS, t + 4)
    k(f'{name}_end:\ns_endpgm')
    return k
```

```python
import sys, json
from common import *
from k0 import make_k0
from k1 import K1
from k2 import make_k2
from k3 import make_k3
from k23 import make_k23
def gen(opt):
    st = opt.get('stamp')
    o = lambda i: dict(opt, stamp_slot=i)
    ks = [K1('k1_kernel', o(0)).build(), make_k2('k2_kernel', o(1)), make_k3('k3_kernel', o(2))]
    if opt.get('f23', 1): ks = ks[:1] + [make_k23('k23_kernel', o(1))]
    txt = build(ks)
    if opt.get('stsc'):
        import re
        txt = '\n'.join((l + ' ' + opt['stsc']) if (l.strip().startswith('buffer_store') and 'sc1' not in l and ', off,' not in l) else l for l in txt.split('\n'))
    for key, pat in (('xa', 's_add_u32 s22, s22, 229376'), ('xb', 's_add_u32 s23, s23, 128'), ('xw', 's_add_u32 s60, s60, 131072'), ('xu', 's_add_u32 s61, s61, 2048'), ('xu', 's_add_u32 s62, s62, 2048')):
        if opt.get(key): txt = txt.replace(pat, 's_nop 0')
    return txt
if __name__ == '__main__':
    out = sys.argv[1]
    opt = eval(sys.argv[2]) if len(sys.argv) > 2 else {}
    open(out, 'w').write(gen(opt))
```

```python
from asmlib import *
from sched import *
WS_XN = 0
WS_PQ = 4 << 20
WS_O = 8 << 20
WS_Z1 = 12 << 20
WS_Z2 = 20 << 20
WS_U = 28 << 20
WS_KVP = 36 << 20
WS_ST = 38 << 20
WS_FLAG = 39 << 20
WS_S = 40 << 20
WS_RAW = 64 << 20
WS_RES = 128 << 20

def srd(k, s, slot, size):
    k(f's_mov_b32 s{s+2}, {size}\ns_mov_b32 s{s+3}, 0x20000')

def f2u(x):
    import struct
    return struct.unpack('<I', struct.pack('<f', x))[0]

def round_bf16(k, v, tmp=None):
    k(f'v_cvt_pk_bf16_f32 v{v}, v{v}, v{v}\nv_lshlrev_b32 v{v}, 16, v{v}')

def ln_finish(k, vs, vq, n, vt):
    k(f'''
    v_mul_f32 v{vs}, {f2u(1.0/n):#x}, v{vs}
    v_mul_f32 v{vq}, {f2u(1.0/n):#x}, v{vq}
    v_fma_f32 v{vq}, -v{vs}, v{vs}, v{vq}
    v_max_f32 v{vq}, 0, v{vq}
    ''')
    round_bf16(k, vq)
    k(f'v_add_f32 v{vq}, {f2u(1e-5):#x}, v{vq}')
    round_bf16(k, vq)
    k(f'v_sqrt_f32 v{vq}, v{vq}')
    round_bf16(k, vs)
    round_bf16(k, vq)
    k(f'v_rcp_f32 v{vq}, v{vq}\ns_nop 0')

def stamp_begin(k, opt, s0=90):
    if opt.get('stamp'): k(f's_memrealtime s[{s0}:{s0+1}]')

def stamp(k, opt, idx, sws, vt, s0=88):
    if not opt.get('stamp'): return
    assert vt % 2 == 0
    k(f'''s_memrealtime s[{s0}:{s0+1}]
    s_memtime s[{s0+2}:{s0+3}]
    s_waitcnt lgkmcnt(0)
    v_mov_b32 v{vt}, s{s0}
    v_mov_b32 v{vt+1}, s{s0+2}
    s_lshl_b32 s{s0+1}, s2, 6
    s_add_u32 s{s0+1}, s{s0+1}, {WS_RES + opt['stamp_slot'] * 16384 + idx * 8}
    buffer_store_dwordx2 v[{vt}:{vt+1}], off, s[{sws}:{sws+3}], s{s0+1}''')

def code_touch(label, swave, vlane, va, uid, first=0, s0=94, st=34, neg=False):
    return [f's_getpc_b64 s[{s0}:{s0+1}]\n{uid}:\ns_add_u32 s{s0}, s{s0}, {label} - {uid}\ns_addc_u32 s{s0+1}, s{s0+1}, {-1 if neg else 0}',
            f'v_lshlrev_b32 v{va}, 7, v{vlane}', f's_sub_u32 s{st}, s{swave}, {first}\ns_max_i32 s{st}, s{st}, 0\nv_mov_b32 v{va+1}, s{st}', f'v_lshl_add_u32 v{va}, v{va+1}, 13, v{va}', f'v_mov_b32 v{va+1}, s{s0+1}',
            f'v_add_co_u32 v{va}, vcc, s{s0}, v{va}', f'v_addc_co_u32 v{va+1}, vcc, 0, v{va+1}, vcc']
```

```python
from common import *

def acc(j, rb): return (j * 4 + rb) * 4
V_XD = 208
V_CA = [242, 243, 244, 245, 220, 221]
V_XB, V_XR = 238, 240
V_RS = 236
A_CF, A_CS, A_ONE, A_CX = 84, 96, 112, 116
V_CX = 234
V_CL = 248
WS_CX = WS_ST + 0x90000
S_DBG, S_XW, S_XR, S_XBEG, S_XEND, S_RSO, S_CNT = 44, 48, 49, 50, 51, 52, 53
WS_RS = WS_ST + 0x80000
V_WD = 216
V_PR = 222
V_WR = 226
V_PR2, V_WR2 = 234, 238
V_T = 246
A_W = 0
A_X = 52
L_WS = 13312
S_X, S_WQ, S_WW, S_WS = 4, 8, 12, 16
S_XO, S_QO, S_WO = 20, 21, 22
S_WB = 24
S_WAVE, S_RG, S_CG, S_P, S_IT = 29, 30, 31, 32, 33
S_DB = 40
NSUB = 32

class K1:
    def __init__(self, name, opt):
        self.name = name; self.opt = opt
        self.RD = RD = opt.get('RD', 4)
        self.L_DUM = RD * L_WS
        self.L_KV = self.L_X = self.L_DUM + 1024
        self.KVS = 24576
        self.L_CS = self.L_X + 4 * 24576
        self.L_RS = self.L_CS + 2048
        lds = self.L_RS + 2048
        assert RD == 4
        self.k = Kernel(name, 256, 256, lds, vgpr=256 + 120, sgpr=96, accum=256)
    def xf(self, u, rb): return A_X + (u & 1) * 16 + rb * 4
    def wf(self, j): return A_W + j * 4
    def mfma(self, typ, j, rb, u):
        d = acc(j, rb); x = self.xf(u, rb); w = self.wf(j)
        a, b = (x, w) if (typ == 'E' and j < 8) else (w, x)
        return ('i', f'v_mfma_f32_16x16x32_bf16 v[{d}:{d+3}], a[{a}:{a+3}], a[{b}:{b+3}], v[{d}:{d+3}]')
    def wread(self, typ, u, j):
        slot = u % self.RD
        hi = slot >= 4
        base = (slot & 3) * L_WS
        npan = 8 if typ == 'E' else 4
        U = 13 - npan
        ops = []
        for t in range(2):
            r = self.wf(j) + 2 * t
            if j < npan:
                off = base + (j >> 2) * 4096 + 512 * t; v = (V_PR2 if hi else V_PR) + (j & 3)
            else:
                c = 4 * U * t + (j - npan)
                off = base + npan * 1024 + 256 * (c >> 3); v = (V_WR2 if hi else V_WR) + (c & 7)
            ops.append(('lds', f'ds_read_b64_tr_b16 a[{r}:{r+1}], v{v} offset:{off}', ('W', u, j)))
        return ops
    def wdma(self, typ, u, slot):
        ring = (u % self.RD) * L_WS
        if typ == 'E':
            lo, sr, so = [(0, S_WQ, S_QO), (4096, S_WQ, S_QO), (8192, S_WW, S_WO), (None, S_WW, S_WO)][slot]
        else:
            lo, sr, so = [(0, S_WQ, S_QO), (4096, S_WW, S_WO), (8192, S_WW, S_WO), (None, S_WW, S_WO)][slot]
        m = f's_add_u32 m0, s{S_WB}, {ring + lo}' if lo is not None else f's_mov_b32 m0, s{S_DB + (u % self.RD)}'
        return [('i', m), ('vm', f'buffer_load_dwordx4 v{V_WD+slot}, s[{sr}:{sr+3}], s{so} offen lds', ('Wd', u))]
    def xdma(self, st, n, sb=S_XW, add=0):
        return [('i', f's_add_u32 m0, s{sb}, {add + n*1024}'), ('vm', f'buffer_load_dwordx4 v{V_XD+n}, s[{S_X}:{S_X+3}], s{S_XO} offen lds', ('Xd', st))]
    def xread(self, u, rb):
        r = self.xf(u, rb)
        return ('lds', f'ds_read_b128 a[{r}:{r+3}], v{V_XR + (u & 1)} offset:{rb*2048}', ('X', u))
    def csread(self, u, e):
        r = A_CF + 2 * e
        return ('lds', f'ds_read_b64_tr_b16 a[{r}:{r+1}], v{V_CA[e] if u >= 28 else V_CX + e} offset:{(u % self.RD) * L_WS}', ('C', u, e >> 1))
    def csmfma(self, m, u=28):
        d = A_CS + 4 * m if u >= 28 else A_CX; w = A_CF + 4 * m if m < 3 else self.wf(12)
        return ('i', f'v_mfma_f32_16x16x32_bf16 a[{d}:{d+3}], a[{w}:{w+3}], a[{A_ONE}:{A_ONE+3}], a[{d}:{d+3}]')
    def incs(self):
        return [('i', f's_add_u32 s{S_QO}, s{S_QO}, {32*6144}'), ('i', f's_add_u32 s{S_WO}, s{S_WO}, {32*7168}')]
    def substep(self, typ, u):
        RD = self.RD
        gaps = [[] for _ in range(52)]; pre = [[] for _ in range(52)]
        for j in range(9):
            r = self.wread(typ, u, j + 4)
            gaps[4 * j].append(r[0]); gaps[4 * j + 1].append(r[1])
        if u + 1 < NSUB:
            nxt = sum([self.wread(typ, u + 1, j) for j in range(4)], [])
            for n, r in enumerate(nxt): gaps[40 + n].append(r)
            gaps[39] += [('wlv', [('W', u, 12)], [('Wd', u + 1), ('Xd', (u + 2) >> 1)]), ('i', 's_barrier')]
            for rb in range(4): gaps[8 * rb + 2].append(self.xread(u + 1, rb))
        for j in range(13): pre[4 * j].append(('wl', [('W', u, j)] + ([('X', u)] if j == 0 else [])))
        if self.opt.get('cs', 1):
            if u >= 28:
                for e in range(6): gaps[4 * e + 1].append(self.csread(u, e))
                for m in range(3): gaps[8 * m + 21] += [('wl', [('C', u, m)]), self.csmfma(m)]
                gaps[49].append(self.csmfma(3))
            else:
                for e in range(2): gaps[4 * e + 1].append(self.csread(u, e))
                gaps[36] += [('wl', [('C', u, 0)]), self.csmfma(0, u)]
        if u <= 27:
            for s in range(4):
                d = self.xdma((u + 5) >> 1, s + (0 if u & 1 else 4))
                gaps[8 * s + 6].append(d[0]); gaps[8 * s + 7].append(d[1])
        if not u & 1:
            gaps[38].append(('i', f's_add_u32 s{S_XO}, s{S_XO}, 128'))
            gaps[48] += [('i', f's_mov_b32 s{S_XW}, s{S_XR}'), ('i', f's_add_u32 s{S_XR}, s{S_XR}, 8192')]
            gaps[50] += [('i', f's_cmp_eq_u32 s{S_XR}, s{S_XEND}'), ('i', f's_cselect_b32 s{S_XR}, s{S_XBEG}, s{S_XR}')]
            gaps[51] += [('i', f'v_add_u32 v{V_XR}, s{S_XR}, v{V_XB}'), ('i', f'v_add_u32 v{V_XR+1}, s{S_XR}, v{V_XB+1}')]
        nm = f'{self.name}_{typ}'
        w0 = lambda kind, txt, tag: [('i', 's_mov_b64 exec, s[92:93]'), (kind, txt, tag), ('i', 's_mov_b64 exec, -1')]
        if u == 28:
            gaps[0].append(('i', f'v_cmp_gt_u32 vcc, 32, v{V_T+7}'))
            gaps[4].append(('i', f's_cbranch_vccnz {nm}_spin\n{nm}_spun:'))
            gaps[48].append(('vm', f'buffer_load_dwordx2 v[{V_RS}:{V_RS+1}], v{V_XD+7}, s[{S_WS}:{S_WS+3}], s{S_RSO} offen sc1', 'rs'))
            gaps[7].append(('i', f'v_and_b32 v{V_T+7}, 48, v255'))
            gaps[self.opt.get('cxs', 14)].append(('i', f's_mov_b64 exec, s[84:85]\nbuffer_store_dwordx4 a[{A_CX}:{A_CX+3}], v{V_T+7}, s[{S_WS}:{S_WS+3}], s86 offen sc1\ns_mov_b64 exec, -1'))
            gaps[15].append(('i', f'v_lshlrev_b32 v{V_XD+7}, 3, v255'))
            gaps[22].append(('i', f'v_lshlrev_b32 v{V_XD+4}, 7, v255'))
            gaps[23].append(('i', f'v_min_u32 v{V_XD+5}, {27*128}, v{V_XD+4}'))
            gaps[30].append(('i', f'v_min_u32 v{V_XD+6}, {15*128}, v{V_XD+4}'))
        if u == 28 and self.opt.get('ct', 1):
            for n, x in enumerate(code_touch(f'{nm}_epi', S_WAVE, 255, V_XD + 2, f'{nm}_pc', 1)): gaps[[34, 35, 36, 37, 38, 50, 51][n]].append(('i', x))
        if u == 29 and self.opt.get('ct', 1):
            gaps[0] += [('i', 's_not_b64 exec, s[92:93]'), ('vm', f'global_load_dword v{V_T+8}, v[{V_XD+2}:{V_XD+3}], off', 'pf'), ('i', 's_mov_b64 exec, -1')]
        if u == 29:
            for r in range(4): gaps[4 * r + 3].append(('i', f'v_mov_b32 v{V_CL+r}, 0'))
            gaps[50].append(('i', f'v_min_u32 v{V_T+6}, 51, v255'))
            gaps[51].append(('i', f'v_lshlrev_b32 v{V_T+6}, 4, v{V_T+6}'))
        if u == 30:
            gaps[self.opt.get('cxg', 34)] += w0('vm', f'buffer_load_dwordx4 v[{V_CL}:{V_CL+3}], v{V_T+6}, s[{S_WS}:{S_WS+3}], s87 offen sc1', 'cx')
        if u == 31:
            gaps[46] += [('wv', ['cx']), ('i', f'v_max3_u32 v{V_T+7}, v{V_CL}, v{V_CL+1}, v{V_CL+2}')]
            gaps[47] += [('i', f'v_max_u32 v{V_T+7}, v{V_T+7}, v{V_CL+3}'), ('i', f'v_cmp_eq_u32 vcc, -1, v{V_T+7}')]
            gaps[48].append(('i', f'v_add_u32 v{V_T+7}, {self.L_CS + 1024}, v{V_T+6}'))
            gaps[50] += [('i', f's_cbranch_vccnz {nm}_cx\n{nm}_cxd:'), *w0('lds', f'ds_write_b128 v{V_T+7}, v[{V_CL}:{V_CL+3}]', 'rsw')]
            gaps[6].append(('i', f's_lshl_b32 s34, s{S_WAVE}, 9'))
            gaps[7].append(('i', f's_add_u32 s34, s34, {self.L_RS}'))
            gaps[14].append(('i', f'v_lshl_add_u32 v{V_T}, v255, 2, s34'))
            gaps[15].append(('i', f's_lshl_b32 s34, s{S_WAVE}, 6'))
            gaps[22].append(('i', f's_add_u32 s34, s34, {self.L_CS}'))
            gaps[23].append(('i', f'v_and_b32 v{V_T+1}, 48, v255'))
            gaps[30].append(('i', f'v_add_u32 v{V_XD}, {self.L_CS + 768}, v{V_T+1}'))
            gaps[31].append(('i', f'v_add_u32 v{V_T+1}, s34, v{V_T+1}'))
            gaps[40] += [('wv', ['rs']), ('lds', f'ds_write_b32 v{V_T}, v{V_RS}', 'rsw')]
            gaps[41].append(('lds', f'ds_write_b32 v{V_T}, v{V_RS+1} offset:256', 'rsw'))
            gaps[43].append(('i', 's_mov_b32 exec_lo, 0x10001\ns_mov_b32 exec_hi, 0x10001'))
            for m in range(3): gaps[43].append(('lds', f'ds_write_b128 v{V_T+1}, a[{A_CS+4*m}:{A_CS+4*m+3}] offset:{256*m}', 'rsw'))
            gaps[43].append(('i', 's_mov_b64 exec, -1'))
        un = u + RD - 1
        if un < NSUB:
            for s in range(4):
                d = self.wdma(typ, un, s)
                gaps[8 * s + 2].append(d[0]); gaps[8 * s + 3].append(d[1])
            inc = self.incs()
            gaps[34].append(inc[0]); gaps[35].append(inc[1])
        if u in (29, 31) and self.opt.get('pf1', 1):
            for n in range(3):
                gaps[8 * n + 2] += [('i', 's_mov_b64 exec, s[92:93]' if u == 31 else 's_not_b64 exec, s[92:93]'),
                                    ('vm', f'buffer_load_dword v{V_T+8}, v{V_XD+4+n}, s[{68+4*n}:{71+4*n}], s{80+n} offen', 'pf'), ('i', 's_mov_b64 exec, -1')]
        ops = []
        for m in range(52):
            ops += pre[m]
            j, rb = m >> 2, m & 3
            if (j + (u & 1)) & 1: rb = 3 - rb
            ops.append(self.mfma(typ, j, rb, u))
            ops += gaps[m]
        return ops
    def setup(self, typ):
        k = self.k; U = 5 if typ == 'E' else 9; t = V_T
        k(f'''
        v_lshrrev_b32 v{t}, 3, v255
        s_lshl_b32 s34, s{S_WAVE}, 3
        v_add_u32 v{t+1}, s34, v{t}                 ; k
        v_bfe_u32 v{t+2}, v{t+1}, 1, 1
        v_bfe_u32 v{t+3}, v{t+1}, 3, 1
        v_lshl_or_b32 v{t+2}, v{t+3}, 1, v{t+2}     ; f
        v_bfe_u32 v{t+3}, v255, 1, 2
        v_xor_b32 v{t+2}, v{t+2}, v{t+3}            ; j
        v_and_b32 v{t+3}, 1, v255
        v_lshlrev_b32 v{t+3}, 4, v{t+3}
        v_lshl_or_b32 v{t+2}, v{t+2}, 5, v{t+3}
        v_mul_u32_u24 v{t+1}, 6144, v{t+1}
        v_add_u32 v{t+1}, v{t+1}, v{t+2}
        s_lshl_b32 s34, s{S_P}, 7
        ''')
        if typ == 'E':
            k(f'''s_add_u32 s35, s34, 2048
            v_add_u32 v{V_WD}, s35, v{t+1}
            s_add_u32 s35, s34, 4096
            v_add_u32 v{V_WD+1}, s35, v{t+1}''')
            wslots = [(2, 0, False), (3, 4, True)]; wcol = 0
        else:
            k(f'v_add_u32 v{V_WD}, s34, v{t+1}')
            wslots = [(1, 0, False), (2, 4, False), (3, 8, True)]; wcol = 160
        k(f's_mul_i32 s35, s{S_P}, 448')
        if wcol: k(f's_add_u32 s35, s35, {wcol}')
        magic = {5: 52429, 9: 58255}[U]; sh = {5: 18, 9: 19}[U]; mg8 = {5: 13108, 9: 7282}[U]
        for slot, n0, only0 in wslots:
            if only0: k(f's_mov_b32 s34, {32*n0}')
            else: k(f's_lshl_b32 s34, s{S_WAVE}, 5\n s_add_u32 s34, s34, {32*n0}')
            k(f'''
            v_lshrrev_b32 v{t}, 1, v255
            v_add_u32 v{t}, s34, v{t}                  ; pos
            v_mul_u32_u24 v{t+1}, {mg8}, v{t}
            v_bfe_u32 v{t+1}, v{t+1}, 19, 1
            v_lshlrev_b32 v{t+1}, 2, v{t+1}
            v_xor_b32 v{t}, v{t}, v{t+1}               ; u
            v_mul_u32_u24 v{t+1}, {magic}, v{t}
            v_lshrrev_b32 v{t+1}, {sh}, v{t+1}         ; k
            v_mul_u32_u24 v{t+2}, {U}, v{t+1}
            v_sub_u32 v{t+2}, v{t}, v{t+2}             ; j
            v_mul_u32_u24 v{t+1}, 7168, v{t+1}
            v_lshl_add_u32 v{t+1}, v{t+2}, 5, v{t+1}
            v_and_b32 v{t+2}, 1, v255
            v_lshl_add_u32 v{t+1}, v{t+2}, 4, v{t+1}
            v_add_u32 v{V_WD+slot}, s35, v{t+1}
            ''')
            if only0:
                k(f'''s_cmp_eq_u32 s{S_WAVE}, 0
                s_cselect_b32 s34, -1, 0
                v_and_b32 v{V_WD+slot}, s34, v{V_WD+slot}
                s_mov_b32 s36, {self.L_DUM}''')
                for r in range(self.RD):
                    k(f's_cselect_b32 s{S_DB+r}, {r*L_WS + 12288}, s36')
    def setup2(self, typ):
        U = 5 if typ == 'E' else 9; t = V_T
        o = f'''
        v_lshrrev_b32 v{t}, 4, v255
        v_bfe_u32 v{t+1}, v255, 2, 2
        v_lshl_add_u32 v{t+1}, v{t}, 3, v{t+1}      ; k0
        v_mul_u32_u24 v{t+2}, {U}, v{t+1}           ; a
        v_and_b32 v{t+3}, 1, v{t}
        v_lshlrev_b32 v{t+3}, 2, v{t+3}             ; x
        v_and_b32 v{t+4}, 3, v255
        v_lshlrev_b32 v{t+4}, 3, v{t+4}
        '''
        for e in range(8):
            o += f'''v_add_u32 v{t+5}, {e}, v{t+2}
            v_xor_b32 v{t+5}, v{t+5}, v{t+3}
            v_lshl_add_u32 v{V_WR+e}, v{t+5}, 5, v{t+4}
            '''
        npan = 13 - U
        for e in range(6):
            m, tt = e >> 1, e & 1
            if 4 * m >= npan:
                o += f'''s_add_u32 s34, s{S_WAVE}, {4*U*tt + 4*m - npan}
                s_and_b32 s35, s34, 7
                s_lshr_b32 s34, s34, 3
                s_lshl_b32 s34, s34, 8
                s_add_u32 s34, s34, {npan*1024}
                v_add_u32 v{t+5}, s35, v{t+2}
                v_xor_b32 v{t+5}, v{t+5}, v{t+3}
                v_lshl_add_u32 v{t+5}, v{t+5}, 5, v{t+4}
                v_add_u32 v{V_CA[e]}, s34, v{t+5}
                '''
        for tt in range(2):
            o += f'''s_add_u32 s34, s83, {4*U*tt - npan + 64}
            s_and_b32 s35, s34, 7
            s_lshr_b32 s34, s34, 3
            s_lshl_b32 s34, s34, 8
            s_add_u32 s34, s34, {npan*1024 - 2048}
            v_add_u32 v{t+5}, s35, v{t+2}
            v_xor_b32 v{t+5}, v{t+5}, v{t+3}
            v_lshl_add_u32 v{t+5}, v{t+5}, 5, v{t+4}
            v_add_u32 v{V_CX+tt}, s34, v{t+5}
            '''
        o += f'''
        v_bfe_u32 v{t+5}, v255, 3, 1
        v_lshrrev_b32 v{t+3}, 1, v{t+3}
        v_or_b32 v{t+5}, v{t+5}, v{t+3}             ; f
        v_lshl_add_u32 v{t+4}, v{t+1}, 7, v{t+4}
        '''
        for j in range(4):
            o += f'''v_xor_b32 v{t+6}, {j}, v{t+5}
            v_lshl_add_u32 v{V_PR+j}, v{t+6}, 5, v{t+4}
            '''
        o += f'''v_xor_b32 v{t+6}, s{S_WAVE}, v{t+5}
        v_lshl_add_u32 v{t+6}, v{t+6}, 5, v{t+4}
        '''
        for e in range(6):
            if 4 * (e >> 1) < npan: o += f'v_add_u32 v{V_CA[e]}, {(e >> 1) * 4096 + 512 * (e & 1)}, v{t+6}\n'
        o += f'''s_lshr_b32 s34, s83, 2
        s_lshl_b32 s34, s34, 12
        s_add_u32 s35, s34, 512
        s_cmp_ge_u32 s83, {npan}|s_cbranch_scc1 {self.name}_{typ}_win|v_add_u32 v{V_CX}, s34, v{t+6}|v_add_u32 v{V_CX+1}, s35, v{t+6}|{self.name}_{typ}_win:
        '''
        o += f'''
        v_and_b32 v{t+5}, 15, v255
        v_lshrrev_b32 v{t+6}, 1, v{t+5}
        v_xor_b32 v{t+6}, v{t+6}, v{t}
        v_lshlrev_b32 v{t+6}, 4, v{t+6}
        v_lshl_add_u32 v{V_XB}, v{t+5}, 7, v{t+6}
        v_xor_b32 v{V_XB+1}, 64, v{V_XB}
        v_add_u32 v{V_XR}, s{S_XBEG}, v{V_XB}
        v_add_u32 v{V_XR+1}, s{S_XBEG}, v{V_XB+1}
        v_mov_b32 v{t+5}, 0x3f803f80
        '''
        for r in range(4): o += f'v_accvgpr_write_b32 a{A_ONE+r}, v{t+5}\n'
        for r in list(range(16)) + [20, 21, 22, 23]: o += f'v_accvgpr_write_b32 a{A_CS+r}, 0\n'
        o += f'v_and_b32 v{t+6}, 7, v255\nv_lshlrev_b32 v{t+6}, 5, v{t+6}\nv_mov_b32 v{t+7}, 32\n'
        o += f'''
        s_lshl_b32 s34, s2, 2
        s_add_u32 s34, s34, s{S_WAVE}
        s_lshl_b32 s80, s34, 13
        s_mul_i32 s81, s34, {28*128}
        s_lshl_b32 s82, s34, 11
        '''
        if self.RD > 4:
            for j in range(12): o += f'v_add_u32 v{V_PR2+j}, {4*L_WS}, v{V_PR+j}\n'
        return o
    def mainloop(self, typ):
        k = self.k; RD = self.RD; q = Q(); ops = []
        for n in range(4): ops.append(('vm', f'buffer_load_dwordx4 v[{4*n}:{4*n+3}], v20, s[{S_X}:{S_X+3}], s55 offen offset:{16*n}', 'sx'))
        G = []
        for u in range(RD - 1):
            g = []
            for s in range(4):
                g += [self.wdma(typ, u, s)] + [self.xdma(u, n, S_XBEG, u * 8192) for n in ([2 * s, 2 * s + 1] if u < 2 else [s])]
            g[-1] = g[-1] + self.incs() + ([('i', f's_add_u32 s{S_XO}, s{S_XO}, 128')] if u < 2 else [])
            G.append(g)
        def weave(dm, text):
            L = [x.strip().replace('|', '\n') for x in text.split('\n') if x.strip() and not x.strip().startswith(';')]
            o = []; n = len(dm)
            for i, d in enumerate(dm):
                part = L[i * len(L) // n:(i + 1) * len(L) // n]
                o += [d[0], ('i', 's_nop 0')] + d[1:] + [('i', x) for x in part]
            return o
        zero = lambda a, b: ''.join(f'v_mov_b32 v{r}, 0\n' for r in range(a, b))
        sa, sb = self.rowstats(typ)
        ops += weave(G[0] + G[1], self.setup2(typ) + zero(24, 208))
        ops.append(('wv', ['sx']))
        ops += weave(G[2], sa)
        if self.opt.get('pf0', 0):
            ops.append(('i', f'''s_lshl_b32 s34, s2, 2
            s_add_u32 s34, s34, s{S_WAVE}
            s_mul_i32 s35, s34, 7168
            s_mul_i32 s34, s34, 6144
            v_lshlrev_b32 v22, 7, v255
            v_min_u32 v23, {47*128}, v22
            v_min_u32 v22, {55*128}, v22'''))
            ops.append(('vm', f'buffer_load_dword v{V_T+8}, v23, s[{S_WQ}:{S_WQ+3}], s34 offen', 'pf'))
            ops.append(('vm', f'buffer_load_dword v{V_T+8}, v22, s[{S_WW}:{S_WW+3}], s35 offen', 'pf'))
        ops.append(('i', sb + zero(0, 24)))
        ops += [('wv', [('Wd', 0), ('Xd', 0)]), ('i', 's_barrier')]
        for rb in range(4): ops.append(self.xread(0, rb))
        for j in range(4): ops += self.wread(typ, 0, j)
        t, _ = resolve(ops, q)
        k('\n'.join(t))
        if self.opt.get('stamp'):
            stamp(k, self.opt, 1, S_WS, V_T); q.v.append('st'); q.l = []
        nit = NSUB // RD
        k(f's_mov_b32 s{S_IT}, {nit - 1}')
        lab = k.label('loop')
        body = lambda it: sum([self.substep(typ, RD * it + x) for x in range(RD)], [])
        t = loop_resolve(body, range(nit - 1), q)
        k(f'.p2align 4\n{lab}:')
        k('\n'.join(t))
        k(f's_cmp_eq_u32 s{S_IT}, s56\ns_cbranch_scc1 {self.name}_{typ}_sig\n{self.name}_{typ}_sigd:')
        k(f's_sub_u32 s{S_IT}, s{S_IT}, 1\ns_cmp_lg_u32 s{S_IT}, 0\ns_cbranch_scc1 {lab}')
        t, _ = resolve(body(nit - 1), q)
        k('\n'.join(t))
        k(f'''{self.name}_{typ}_epi:
        s_nop 4
        s_mov_b32 exec_lo, 0x10001
        s_mov_b32 exec_hi, 0x10001
        ds_write_b128 v{V_XD}, a[{A_CS+12}:{A_CS+15}]
        s_mov_b64 exec, -1
        s_waitcnt lgkmcnt(0)
        s_barrier''')
        stamp(k, self.opt, 2, S_WS, V_T)
    def outline(self, typ):
        nm = f'{self.name}_{typ}'
        self.k(f'''{nm}_sig:
        s_cmp_eq_u32 s56, 2
        s_cbranch_scc0 {nm}_sig1
        buffer_load_dword v{V_T+7}, v{V_T+6}, s[{S_DBG}:{S_DBG+3}], 0 offen sc1
        s_branch {nm}_sigd
        {nm}_sig1:
        s_mov_b32 s56, 2
        v_mov_b32 v{V_T}, 1
        s_mov_b64 exec, 1
        buffer_atomic_add v{V_T}, off, s[{S_DBG}:{S_DBG+3}], s{S_CNT} sc1
        s_mov_b64 exec, -1
        s_branch {nm}_sigd
        {nm}_spin:
        s_mov_b32 s35, 0x40000
        {nm}_spin1:
        buffer_load_dword v{V_T+7}, v{V_T+6}, s[{S_DBG}:{S_DBG+3}], 0 offen sc1
        s_waitcnt vmcnt(0)
        v_cmp_gt_u32 vcc, 32, v{V_T+7}
        s_sub_u32 s35, s35, 1
        s_cbranch_scc1 {nm}_spun
        s_cbranch_vccnz {nm}_spin1
        s_branch {nm}_spun
        {nm}_cx:
        s_mov_b32 s35, 0x40000
        {nm}_cx1:
        buffer_load_dwordx4 v[{V_CL}:{V_CL+3}], v{V_T+6}, s[{S_WS}:{S_WS+3}], s87 offen sc1
        s_waitcnt vmcnt(0)
        v_max3_u32 v{V_XD+1}, v{V_CL}, v{V_CL+1}, v{V_CL+2}
        v_max_u32 v{V_XD+1}, v{V_XD+1}, v{V_CL+3}
        v_cmp_eq_u32 vcc, -1, v{V_XD+1}
        s_sub_u32 s35, s35, 1
        s_cbranch_scc1 {nm}_cxd
        s_cbranch_vccnz {nm}_cx1
        s_branch {nm}_cxd''')
    def rowstats(self, typ):
        class B:
            t = ''
            def __call__(s, x): s.t += x + '\n'
        k = B(); nm = f'{self.name}_{typ}'
        k('v_mov_b32 v21, 0x3f803f80')
        for n in range(16):
            a, b = 16 + (n & 1), 18 + (n & 1)
            k(f'v_dot2_f32_bf16 v{a}, v{n}, v21, {"v%d" % a if n > 1 else 0}\nv_dot2_f32_bf16 v{b}, v{n}, v{n}, {"v%d" % b if n > 1 else 0}')
        k(f'''v_mov_b32 v0, -1
        v_mov_b32 v1, -1
        v_and_b32 v8, 48, v255
        v_mov_b32 v2, -1
        v_mov_b32 v3, -1
        v_mov_b32 v4, 0
        v_add_f32 v16, v16, v17
        v_add_f32 v17, v18, v19
        v_lshlrev_b32 v5, 3, v255
        v_lshlrev_b32 v6, 2, v255''')
        for r in (8, 4, 2, 1):
            k(f'v_add_f32_dpp v16, v16, v16 row_ror:{r} row_mask:0xf bank_mask:0xf\nv_add_f32_dpp v17, v17, v17 row_ror:{r} row_mask:0xf bank_mask:0xf\ns_nop 0')
        k(f'''v_mov_b32 v18, v16
        v_mov_b32 v19, v17
        v_lshrrev_b32 v7, 5, v255
        v_lshlrev_b32 v7, 3, v7
        v_permlane16_swap_b32 v18, v16
        v_permlane16_swap_b32 v19, v17
        v_add_f32 v16, v16, v18
        v_add_f32 v17, v17, v19''')
        ln_finish(k, 16, 17, 1024, 18)
        k(f'''v_sub_f32 v18, 0, v16
        v_mov_b32 v16, v17
        v_mov_b32 v17, v18''')
        ta = k.t; k.t = ''
        k(f'''s_mov_b32 exec_lo, 1
        s_mov_b32 exec_hi, 1
        buffer_store_dwordx2 v[16:17], v7, s[{S_WS}:{S_WS+3}], s57 offen sc1
        s_mov_b64 exec, s[84:85]
        buffer_store_dwordx4 v[0:3], v8, s[{S_WS}:{S_WS+3}], s86 offen sc1
        s_mov_b64 exec, -1
        s_cmp_lt_u32 s{S_P}, 8
        s_cbranch_scc1 {nm}_nost
        buffer_store_dwordx2 v[2:3], v5, s[{S_WS}:{S_WS+3}], s58 offen sc1
        {nm}_nost:
        s_cmp_lg_u32 s{S_WAVE}, 0
        s_cbranch_scc1 {nm}_nofl
        buffer_store_dword v4, v6, s[{S_WS}:{S_WS+3}], s59 offen
        {nm}_nofl:
        s_nop 1''')
        return ta, k.t
    def prologue(self):
        k = self.k; name = self.name
        k(f'''
        s_cmp_ge_u32 s2, 256
        s_cbranch_scc1 {name}_end
        s_load_dwordx2 s[{S_X}:{S_X+1}], s[0:1], 0
        s_load_dwordx2 s[{S_DBG}:{S_DBG+1}], s[0:1], 72
        s_load_dwordx2 s[{S_WQ}:{S_WQ+1}], s[0:1], 8
        s_load_dwordx2 s[{S_WW}:{S_WW+1}], s[0:1], 32
        s_load_dwordx2 s[{S_WS}:{S_WS+1}], s[0:1], 80
        s_load_dwordx2 s[68:69], s[0:1], 40
        s_load_dwordx2 s[72:73], s[0:1], 56
        s_load_dwordx2 s[76:77], s[0:1], 16
        v_lshrrev_b32 v1, 6, v0
        v_and_b32 v255, 63, v0
        ''')
        if self.opt.get('t0', 1): start_touch(k, name + '_pc0', None, name + '_O', 5, va=248, vd=254)
        srd(k, 68, 0, 8 << 20); srd(k, 72, 0, 1792 * 2048); srd(k, 76, 0, 2 << 20)
        srd(k, S_X, 0, 4 << 20); srd(k, S_DBG, 0, 256)
        k(f'v_readfirstlane_b32 s{S_WAVE}, v1')
        srd(k, S_WQ, 0, 1024 * 6144); srd(k, S_WW, 0, 1024 * 7168); srd(k, S_WS, 0, 0x10000000)
        k(f'''
        s_and_b32 s34, s2, 1
        s_lshl_b32 s34, s34, 2
        s_bfe_u32 s35, s2, 0x20003
        s_add_u32 s{S_RG}, s34, s35
        s_bfe_u32 s34, s2, 0x20001
        s_lshl_b32 s34, s34, 3
        s_lshr_b32 s35, s2, 5
        s_add_u32 s{S_CG}, s34, s35
        s_lshr_b32 s{S_P}, s{S_CG}, 1
        s_lshl_b32 s{S_WB}, s{S_WAVE}, 10
        s_mov_b32 s{S_XO}, 0
        s_mov_b32 s{S_QO}, 0
        s_mov_b32 s{S_WO}, 0
        s_lshl_b32 s34, s{S_RG}, 19
        s_lshl_b32 s35, s{S_WAVE}, 17
        s_add_u32 s34, s34, s35
        v_lshrrev_b32 v1, 4, v255
        v_and_b32 v2, 7, v255
        v_xor_b32 v1, v1, v2
        v_lshl_add_u32 v1, v1, 4, s34
        v_lshrrev_b32 v2, 3, v255
        v_lshl_add_u32 v{V_XD}, v2, 11, v1
        v_xor_b32 v1, 64, v{V_XD}
        v_add_u32 v{V_XD+1}, 16384, v1
        v_lshlrev_b32 v20, 6, v255
        s_mul_i32 s{S_XBEG}, s{S_WAVE}, 24576
        s_add_u32 s{S_XBEG}, s{S_XBEG}, {self.L_X}
        s_add_u32 s{S_XEND}, s{S_XBEG}, 24576
        s_add_u32 s{S_XW}, s{S_XBEG}, 16384
        s_mov_b32 s{S_XR}, s{S_XBEG}
        s_lshl_b32 s{S_CNT}, s{S_RG}, 5
        s_lshl_b32 s34, s{S_RG}, 8
        s_lshl_b32 s35, s{S_WAVE}, 6
        s_add_u32 s35, s34, s35
        s_lshl_b32 s35, s35, 3
        s_add_u32 s{S_RSO}, s35, {WS_RS}
        s_and_b32 s36, s{S_CG}, 15
        s_lshl_b32 s36, s36, 14
        s_add_u32 s58, s35, s36
        s_add_u32 s58, s58, {WS_ST}
        s_lshl_b32 s35, s{S_CG}, 3
        s_add_u32 s34, s34, s35
        s_lshl_b32 s35, s{S_WAVE}, 1
        s_add_u32 s34, s34, s35
        s_lshl_b32 s55, s34, 11
        s_lshl_b32 s57, s34, 3
        s_add_u32 s57, s57, {WS_RS}
        s_lshl_b32 s59, s2, 8
        s_add_u32 s59, s59, {WS_FLAG}
        s_lshl_b32 s83, s{S_RG}, 2
        s_add_u32 s83, s83, s{S_WAVE}
        s_cmp_le_u32 s83, 12
        s_cselect_b32 s84, 0x10001, 0
        s_mov_b32 s85, s84
        s_min_u32 s83, s83, 12
        s_lshl_b32 s87, s{S_CG}, 10
        s_add_u32 s87, s87, {WS_CX}
        s_lshl_b32 s86, s83, 6
        s_add_u32 s86, s86, s87
        s_cmp_eq_u32 s{S_WAVE}, 0
        s_cselect_b32 s92, -1, 0
        s_cselect_b32 s93, -1, 0
        s_cselect_b32 s56, {NSUB // 4 - 1}, -1
        ''')
        for i in range(2, 8): k(f'v_add_u32 v{V_XD+i}, {(i >> 1)*32768}, v{V_XD + (i & 1)}')
    def build(self):
        from k1epi import epilogue
        k = self.k; name = self.name
        self.prologue()
        k(f's_bitcmp1_b32 s{S_CG}, 0\ns_cbranch_scc1 {name}_O')
        for typ in 'EO':
            if typ == 'O': k(f'{name}_O:')
            self.setup(typ)
            k('s_waitcnt lgkmcnt(0)')
            stamp(k, self.opt, 0, S_WS, V_T)
            if self.opt.get('stamp'): k('s_waitcnt vmcnt(0)')
            self.mainloop(typ)
            epilogue(self, typ)
            stamp(k, self.opt, 6, S_WS, V_T)
            k('s_endpgm')
            self.outline(typ)
        k(f'{name}_end:\ns_endpgm')
        return k
```

```python
from common import *
from k1 import acc, S_WS, S_WAVE, S_RG, S_CG, S_P
import math
VC = 208
VT = 212
VK = 220
VS = 228
VA = 244
SB = 60
LOG2E = 1.4426950408889634
C1 = -2.0 * math.sqrt(2.0 / math.pi) * LOG2E
C2 = C1 * 0.044715

def pairs(regs4):
    return [r + o for r in regs4 for o in (0, 2)]

def gelu(k, regs4, rbs, stats_rb=None, first=False):
    P = pairs(regs4); T = [VT + 2 * i for i in range(len(P))]; R = [rb for rb in rbs for _ in range(2)]
    for p, t in zip(P, T): k(f'v_pk_mul_f32 v[{t}:{t+1}], v[{p}:{p+1}], v[{p}:{p+1}]')
    for rb, t in zip(R, T): k(f'v_pk_fma_f32 v[{t}:{t+1}], v[{t}:{t+1}], v[{VK+2*rb}:{VK+2*rb+1}], v[{VK+2*rb}:{VK+2*rb+1}] op_sel:[0,0,1] op_sel_hi:[1,0,1]')
    for p, t in zip(P, T): k(f'v_pk_mul_f32 v[{t}:{t+1}], v[{t}:{t+1}], v[{p}:{p+1}]')
    for t in T: k(f'v_exp_f32 v{t}, v{t}\nv_exp_f32 v{t+1}, v{t+1}')
    for rb, t in zip(R, T):
        c, h = riop(rb)
        k(f'v_pk_fma_f32 v[{t}:{t+1}], v[{t}:{t+1}], v[{c}:{c+1}], v[{c}:{c+1}] op_sel:[0,{h},{h}] op_sel_hi:[1,{h},{h}]')
    for t in T: k(f'v_rcp_f32 v{t}, v{t}\nv_rcp_f32 v{t+1}, v{t+1}')
    for p, t in zip(P, T): k(f'v_pk_mul_f32 v[{p}:{p+1}], v[{p}:{p+1}], v[{t}:{t+1}]')
    if stats_rb is not None:
        s = VS + 2 * stats_rb; q = VS + 8 + 2 * stats_rb
        for n, p in enumerate(P):
            if first and n == 0:
                k(f'v_pk_mul_f32 v[{q}:{q+1}], v[{p}:{p+1}], v[{p}:{p+1}]')
            elif first and n == 1:
                k(f'v_pk_add_f32 v[{s}:{s+1}], v[{P[0]}:{P[0]+1}], v[{p}:{p+1}]')
                k(f'v_pk_fma_f32 v[{q}:{q+1}], v[{p}:{p+1}], v[{p}:{p+1}], v[{q}:{q+1}]')
            else:
                k(f'v_pk_add_f32 v[{s}:{s+1}], v[{s}:{s+1}], v[{p}:{p+1}]')
                k(f'v_pk_fma_f32 v[{q}:{q+1}], v[{p}:{p+1}], v[{p}:{p+1}], v[{q}:{q+1}]')

def phi(k, regs4, rb=None, RL=None, RQ=None):
    P = pairs(regs4); T = [VT + 2 * i for i in range(len(P))]
    c = VC + 2
    if rb is not None:
        g = VK + 2 * rb
        for p, t in zip(P, T): k(f'v_pk_mul_f32 v[{t}:{t+1}], v[{p}:{p+1}], v[{g}:{g+1}] op_sel_hi:[1,0]')
        for p in P: k(f'v_pk_fma_f32 v[{p}:{p+1}], v[{p}:{p+1}], v[{g}:{g+1}], 1.0 op_sel:[0,1,0] op_sel_hi:[1,1,0]')
    else:
        for i, (p, t) in enumerate(zip(P, T)): k(f'v_pk_mul_f32 v[{t}:{t+1}], v[{p}:{p+1}], v[{RL+2*i}:{RL+2*i+1}]')
        for i, p in enumerate(P): k(f'v_pk_fma_f32 v[{p}:{p+1}], v[{p}:{p+1}], v[{RQ+2*i}:{RQ+2*i+1}], 1.0 op_sel_hi:[1,1,0]')
    for t in T: k(f'v_exp_f32 v{t}, v{t} clamp\nv_exp_f32 v{t+1}, v{t+1} clamp')
    for p, t in zip(P, T): k(f'v_max_f32 v{p}, v{p}, v{t}\nv_max_f32 v{p+1}, v{p+1}, v{t+1}')
    for p in P: k(f'v_pk_add_f32 v[{p}:{p+1}], v[{p}:{p+1}], v[{c}:{c+1}] op_sel:[0,1] op_sel_hi:[1,1]')

def pack(k, a, b=None):
    k(f'v_cvt_pk_bf16_f32 v{a}, v{a}, v{a+1}\nv_cvt_pk_bf16_f32 v{a+1}, v{a+2}, v{a+3}')
    if b is not None:
        k(f'v_cvt_pk_bf16_f32 v{a+2}, v{b}, v{b+1}\nv_cvt_pk_bf16_f32 v{a+3}, v{b+2}, v{b+3}')

def win_groups(typ):
    if typ == 'E': return [(8, 9, 0, None), (10, 11, 1024, None), (12, None, 2048, 0)]
    return [(5, 6, 0, None), (7, 8, 1024, None), (9, 10, 2048, None), (11, 12, 3072, None), (4, None, 0, 1)]

def bases(k, s0, ws, ncp, cp_sgpr):
    k(f'''s_lshl_b32 s34, s{S_RG}, 4
    s_lshl_b32 s35, s{S_WAVE}, 2
    s_add_u32 s34, s34, s35
    s_mul_i32 s34, s34, {ncp}
    s_add_u32 s34, s34, s{cp_sgpr}
    s_lshl_b32 s34, s34, 10
    s_add_u32 s{s0}, s34, {ws}''')
    for rb in range(1, 4): k(f's_add_u32 s{s0+rb}, s{s0}, {rb*ncp*1024}')

def riop(rb):
    return (VC if rb < 2 else 252), rb & 1

def lnfix(K, k, blocks, mode):
    A0, A1 = 250, 251
    k(f's_lshl_b32 s34, s{S_WAVE}, 9\ns_add_u32 s34, s34, {K.L_RS}')
    if mode != 'kv':
        NM, RR, CQ = 212, 216, 220
        k(f'''v_and_b32 v{A0}, 15, v255
        v_lshl_add_u32 v{A0}, v{A0}, 2, s34
        v_and_b32 v{A1}, 48, v255
        v_add_u32 v{A1}, {K.L_CS}, v{A1}''')
        rd = lambda n: k(f'ds_read_b128 v[{CQ+8*(n%3)}:{CQ+8*(n%3)+3}], v{A1} offset:{64*blocks[n]}\nds_read_b128 v[{CQ+8*(n%3)+4}:{CQ+8*(n%3)+7}], v{A1} offset:{64*blocks[n]+1024}')
        for h in range(2): k(f'ds_read2_b32 v[{NM+2*h}:{NM+2*h+1}], v{A0} offset0:{64+32*h} offset1:{64+32*h+16}')
        for h in range(2): k(f'ds_read2_b32 v[{RR+2*h}:{RR+2*h+1}], v{A0} offset0:{32*h} offset1:{32*h+16}')
        rd(0); rd(1)
        N = len(blocks)
        for n, j in enumerate(blocks):
            if n + 2 < N: rd(n + 2)
            k(f's_waitcnt lgkmcnt({2 * min(2, N - 1 - n)})')
            c = CQ + 8 * (n % 3)
            for o in (0, 2): k(f'v_pk_add_f32 v[{c+o}:{c+o+1}], v[{c+o}:{c+o+1}], v[{c+4+o}:{c+5+o}]')
            for rb in range(4):
                for o in (0, 2):
                    p = acc(j, rb) + o; m = NM + (rb & 2)
                    k(f'v_pk_fma_f32 v[{p}:{p+1}], v[{c+o}:{c+o+1}], v[{m}:{m+1}], v[{p}:{p+1}] op_sel:[0,{rb&1},0] op_sel_hi:[1,{rb&1},1]')
        if mode == 'gelu':
            for rb in range(4): k(f'v_mul_f32 v{NM+rb}, v{RR+rb}, v{RR+rb}')
            for rb in range(4): k(f'v_mul_f32 v{VK+2*rb}, {f2u(C2):#x}, v{RR+rb}\nv_mul_f32 v{VK+2*rb+1}, {f2u(C1):#x}, v{RR+rb}')
            for rb in range(4): k(f'v_mul_f32 v{VK+2*rb}, v{VK+2*rb}, v{NM+rb}\nv_rcp_f32 v{riop(rb)[0]+riop(rb)[1]}, v{RR+rb}')
        else:
            for rb in range(4): k(f'v_mul_f32 v{VK+2*rb}, {f2u(LOG2E):#x}, v{RR+rb}\nv_mov_b32 v{VK+2*rb+1}, v{RR+rb}')
    else:
        T, CS, NQ = 212, 220, 228
        k(f'''v_and_b32 v{A0}, 48, v255
        v_add_u32 v{A0}, s34, v{A0}
        v_and_b32 v{A1}, 15, v255
        v_lshlrev_b32 v{A1}, 2, v{A1}
        v_add_u32 v{A1}, {K.L_CS}, v{A1}''')
        for n in range(4): k(f'ds_read2_b32 v[{CS+2*n}:{CS+2*n+1}], v{A1} offset0:{32*n} offset1:{32*n+16}')
        k(f'v_add_u32 v{A1}, 1024, v{A1}')
        for n in range(4): k(f'ds_read2_b32 v[{T+2*n}:{T+2*n+1}], v{A1} offset0:{32*n} offset1:{32*n+16}')
        for rb in range(4): k(f'ds_read_b128 v[{NQ+4*rb}:{NQ+4*rb+3}], v{A0} offset:{64*rb+256}')
        k('s_waitcnt lgkmcnt(3)')
        for n in range(4): k(f'v_pk_add_f32 v[{CS+2*n}:{CS+2*n+1}], v[{CS+2*n}:{CS+2*n+1}], v[{T+2*n}:{T+2*n+1}]')
        for rb in range(4):
            if rb: k(f's_waitcnt lgkmcnt({3 if rb < 3 else 2})')
            for j in range(8):
                for o in (0, 2):
                    p = acc(j, rb) + o; c = CS + (j & 6)
                    k(f'v_pk_fma_f32 v[{p}:{p+1}], v[{NQ+4*rb+o}:{NQ+4*rb+o+1}], v[{c}:{c+1}], v[{p}:{p+1}] op_sel:[0,{j&1},0] op_sel_hi:[1,{j&1},1]')
            k(f'ds_read_b128 v[{NQ+4*rb}:{NQ+4*rb+3}], v{A0} offset:{64*rb}')
        k('s_waitcnt lgkmcnt(0)')

def qpart(K, k):
    lnfix(K, k, [0, 1, 2, 3], 'q')
    k(f's_lshl_b32 s36, s{S_P}, 1')
    bases(k, SB + 4, WS_PQ, 32, 36)
    n = 0
    for hh in range(2):
        for rb in range(4):
            a, b = acc(2 * hh, rb), acc(2 * hh + 1, rb)
            phi(k, [a, b], rb)
            pack(k, a, b)
            k(f'buffer_store_dwordx4 v[{a}:{a+3}], v{VA}, s[{S_WS}:{S_WS+3}], s{SB+4+rb} offen offset:{hh*1024}')

def kvpart(K, k):
    lnfix(K, k, list(range(8)), 'kv')
    n = 0
    for ks in range(2):
        RQ = 228 + 8 * ks
        for i in range(4): k(f'v_pk_mul_f32 v[{VK+2*i}:{VK+2*i+1}], v[{RQ+2*i}:{RQ+2*i+1}], v[{VC+2}:{VC+3}] op_sel_hi:[1,0]')
        for j in range(4, 8):
            for i, p in enumerate(pairs([acc(j, 2 * ks), acc(j, 2 * ks + 1)])): k(f'v_pk_mul_f32 v[{p}:{p+1}], v[{p}:{p+1}], v[{RQ+2*i}:{RQ+2*i+1}]')
            pack(k, acc(j, 2 * ks), acc(j, 2 * ks + 1))
        for j in range(4):
            a, b = acc(j, 2 * ks), acc(j, 2 * ks + 1)
            phi(k, [a, b], None, VK, RQ)
            pack(k, a, b)
    free = [acc(j, rb) for j in range(8) for rb in (1, 3)]
    ones = free[12]
    for r in range(4): k(f'v_mov_b32 v{ones+r}, 0x3f803f80')
    k('s_nop 1')
    blocks = []
    for hh in range(2):
        for db in range(2):
            for eb in range(3): blocks.append((hh, db, eb))
    for ks in range(2):
        for n, (hh, db, eb) in enumerate(blocks):
            d = free[n]; a = acc(2 * hh + db, 2 * ks)
            b = acc(4 + 2 * hh + eb, 2 * ks) if eb < 2 else ones
            c = f'v[{d}:{d+3}]' if ks else '0'
            k(f'v_mfma_f32_16x16x32_bf16 v[{d}:{d+3}], v[{a}:{a+3}], v[{b}:{b+3}], {c}')
    k(f'''s_mul_i32 s34, s{S_WAVE}, {K.KVS}
    s_add_u32 s34, s34, {K.L_KV}
    v_add_u32 v{VA+4}, s34, v{VA}
    s_mul_i32 s34, s{S_WAVE}, 3072
    s_add_u32 s34, s34, {K.L_KV}
    v_add_u32 v{VA+5}, s34, v{VA}
    v_add_u32 v250, {2*K.KVS}, v{VA+5}
    s_nop 1''')
    for n in range(12):
        k(f'ds_write_b128 v{VA+4}, v[{free[n]}:{free[n]+3}] offset:{n*1024}')
    k('s_waitcnt lgkmcnt(0)\ns_barrier')
    tmp = [acc(j, 0) for j in range(8)] + [acc(j, 2) for j in range(4)]
    for n in range(3):
        for w in range(4):
            t = tmp[n * 4 + w]
            k(f'ds_read_b128 v[{t}:{t+3}], v{VA+5 if w < 2 else 250} offset:{(w%2)*K.KVS + n*1024}')
    k(f'''s_lshl_b32 s34, s{S_RG}, 5
    s_lshl_b32 s35, s{S_P}, 1
    s_add_u32 s34, s34, s35
    s_mul_i32 s34, s34, 6
    s_mul_i32 s35, s{S_WAVE}, 3
    s_add_u32 s34, s34, s35
    s_lshl_b32 s34, s34, 10
    s_add_u32 s34, s34, {WS_KVP}''')
    for n in range(3):
        t = tmp[n * 4:n * 4 + 4]
        k(f's_waitcnt lgkmcnt({8 - 4*n})')
        for o in (0, 2):
            k(f'v_pk_add_f32 v[{t[0]+o}:{t[0]+o+1}], v[{t[0]+o}:{t[0]+o+1}], v[{t[1]+o}:{t[1]+o+1}]')
            k(f'v_pk_add_f32 v[{t[2]+o}:{t[2]+o+1}], v[{t[2]+o}:{t[2]+o+1}], v[{t[3]+o}:{t[3]+o+1}]')
        for o in (0, 2):
            k(f'v_pk_add_f32 v[{t[0]+o}:{t[0]+o+1}], v[{t[0]+o}:{t[0]+o+1}], v[{t[2]+o}:{t[2]+o+1}]')
        k(f'buffer_store_dwordx4 v[{t[0]}:{t[0]+3}], v{VA}, s[{S_WS}:{S_WS+3}], s34 offen offset:{n*1024}')

def epilogue(K, typ):
    k = K.k; name = K.name
    G = win_groups(typ)
    k(f'''
    v_mov_b32 v{VC+2}, {f2u(LOG2E):#x}
    v_mov_b32 v{VC+3}, {f2u(1e-6):#x}
    v_lshlrev_b32 v{VA}, 4, v255
    s_and_b32 s36, s{S_P}, 7
    s_mul_i32 s36, s36, 7
    ''')
    if typ == 'O': k('s_add_u32 s36, s36, 2')
    lnfix(K, k, [j for g in G for j in g[:2] if j is not None], 'gelu')
    stamp(k, K.opt, 7, S_WS, 250)
    k(f's_cmp_ge_u32 s{S_P}, 8\ns_cbranch_scc1 {name}_{typ}_z2')
    bases(k, SB, WS_Z1, 56, 36)
    k(f'v_add_u32 v{VA+1}, {1024 if typ == "O" else 0}, v{VA}')
    n = 0
    for (ja, jb, off, hb) in G:
        if jb is not None:
            for rb in range(4):
                a, b = acc(ja, rb), acc(jb, rb)
                gelu(k, [a, b], [rb, rb])
                pack(k, a, b)
                k(f'buffer_store_dwordx4 v[{a}:{a+3}], v{VA+1}, s[{S_WS}:{S_WS+3}], s{SB+rb} offen offset:{off}')
        else:
            for rb in (0, 2):
                a, b = acc(ja, rb), acc(ja, rb + 1)
                gelu(k, [a, b], [rb, rb + 1])
                pack(k, a); pack(k, b)
                k(f'buffer_store_dwordx2 v[{a}:{a+1}], v{VA}, s[{S_WS}:{S_WS+3}], s{SB+rb} offen offset:{off + 8*hb}')
                k(f'buffer_store_dwordx2 v[{b}:{b+1}], v{VA}, s[{S_WS}:{S_WS+3}], s{SB+rb+1} offen offset:{off + 8*hb}')
    stamp(k, K.opt, 3, S_WS, 250)
    if typ == 'O': qpart(K, k)
    else: kvpart(K, k)
    stamp(k, K.opt, 4, S_WS, 250)
    stamp(k, K.opt, 5, S_WS, 250)
    k(f's_branch {name}_{typ}_done')
    k(f'{name}_{typ}_z2:')
    bases(k, SB, WS_Z2, 56, 36)
    n = 0
    for gi, (ja, jb, off, hb) in enumerate(G):
        for rb in range(4):
            regs = [acc(ja, rb)] + ([acc(jb, rb)] if jb is not None else [])
            gelu(k, regs, [rb] * len(regs), stats_rb=rb, first=(gi == 0))
    S = [VS + 2 * rb for rb in range(4)]; Qs = [VS + 8 + 2 * rb for rb in range(4)]
    for r in S + Qs: k(f'v_add_f32 v{r}, v{r}, v{r+1}')
    k(f'''s_lshl_b32 s34, s{S_RG}, 8
    s_lshl_b32 s35, s{S_WAVE}, 6
    s_add_u32 s34, s34, s35
    s_lshl_b32 s34, s34, 3
    s_add_u32 s37, s34, {WS_ST}
    s_and_b32 s35, s{S_CG}, 15
    s_lshl_b32 s35, s35, 14
    s_add_u32 s38, s37, s35''')
    for X in (S, Qs):
        k(f'v_permlane32_swap_b32 v{X[0]}, v{X[2]}\nv_permlane32_swap_b32 v{X[1]}, v{X[3]}')
    for X in (S, Qs):
        k(f'v_add_f32 v{X[0]}, v{X[0]}, v{X[2]}\nv_add_f32 v{X[1]}, v{X[1]}, v{X[3]}')
    k(f'v_lshlrev_b32 v{VA+3}, 3, v255\ns_nop 0')
    for X in (S, Qs): k(f'v_permlane16_swap_b32 v{X[0]}, v{X[1]}')
    k(f'v_add_f32 v{VS}, v{S[0]}, v{S[1]}\nv_add_f32 v{VS+1}, v{Qs[0]}, v{Qs[1]}')
    k(f'buffer_store_dwordx2 v[{VS}:{VS+1}], v{VA+3}, s[{S_WS}:{S_WS+3}], s38 offen sc1')
    stamp(k, K.opt, 3, S_WS, 250)
    if typ == 'O': qpart(K, k)
    else: kvpart(K, k)
    stamp(k, K.opt, 4, S_WS, 250)
    t = VT
    k(f'''
    v_bfe_u32 v{t}, v255, 2, 1
    v_lshlrev_b32 v{t}, 9, v{t}
    v_bfe_u32 v{t+1}, v255, 3, 1
    v_lshl_add_u32 v{t}, v{t+1}, 7, v{t}
    v_and_b32 v{t+1}, 3, v255
    v_lshl_add_u32 v{t}, v{t+1}, 5, v{t}
    v_bfe_u32 v{t+1}, v255, 5, 1
    v_lshl_add_u32 v{t}, v{t+1}, 4, v{t}          ; + h*16
    v_bfe_u32 v{t+1}, v255, 4, 1
    v_lshl_add_u32 v{VA+1}, v{t+1}, 8, v{t}
    v_lshl_add_u32 v{VA+2}, v{t+1}, 3, v{t}
    ''')
    if typ == 'O': k(f'v_add_u32 v{VA+1}, 1024, v{VA+1}')
    R = 0
    k(f's_mov_b32 s39, 0x40000\ns_nop 0\n{name}_{typ}_poll:')
    k('s_mov_b32 s35, s37')
    for c in range(16):
        k(f'buffer_load_dwordx2 v[{R+2*c}:{R+2*c+1}], v{VA+3}, s[{S_WS}:{S_WS+3}], s35 offen sc1')
        if c < 15: k('s_add_u32 s35, s35, 16384')
    k('s_waitcnt vmcnt(0)')
    k(f'v_max3_u32 v{t}, v{R}, v{R+1}, v{R+2}')
    for c in range(3, 31, 2): k(f'v_max3_u32 v{t}, v{t}, v{R+c}, v{R+c+1}')
    k(f'''v_max_u32 v{t}, v{t}, v{R+31}
    v_cmp_eq_u32 vcc, -1, v{t}
    s_sub_u32 s39, s39, 1
    s_cbranch_scc1 {name}_{typ}_go
    s_cbranch_vccnz {name}_{typ}_poll
    {name}_{typ}_go:''')
    stamp(k, K.opt, 5, S_WS, 250)
    for st in (8, 4, 2, 1):
        for c in range(st): k(f'v_pk_add_f32 v[{R+2*c}:{R+2*c+1}], v[{R+2*c}:{R+2*c+1}], v[{R+2*(c+st)}:{R+2*(c+st)+1}]')
    ln_finish(k, R, R + 1, 1792, t)
    k(f'''v_mul_f32 v{R}, v{R}, v{R+1}
    v_mov_b32 v{VS}, v{R+1}
    v_mov_b32 v{VS+4}, v{R+1}
    v_sub_f32 v{VS+1}, 0, v{R}
    v_sub_f32 v{VS+5}, 0, v{R}
    s_nop 1
    v_permlane32_swap_b32 v{VS}, v{VS+4}
    v_permlane32_swap_b32 v{VS+1}, v{VS+5}
    v_mov_b32 v{VS+2}, v{VS}
    v_mov_b32 v{VS+3}, v{VS+1}
    v_mov_b32 v{VS+6}, v{VS+4}
    v_mov_b32 v{VS+7}, v{VS+5}
    s_nop 0
    v_permlane16_swap_b32 v{VS}, v{VS+2}
    v_permlane16_swap_b32 v{VS+1}, v{VS+3}
    v_permlane16_swap_b32 v{VS+4}, v{VS+6}
    v_permlane16_swap_b32 v{VS+5}, v{VS+7}
    ''')
    for (ja, jb, off, hb) in G:
        for rb in range(4):
            regs = [acc(ja, rb)] + ([acc(jb, rb)] if jb is not None else [])
            c = VS + 2 * rb
            for p in pairs(regs):
                k(f'v_pk_fma_f32 v[{p}:{p+1}], v[{p}:{p+1}], v[{c}:{c+1}], v[{c}:{c+1}] op_sel:[0,0,1] op_sel_hi:[1,0,1]')
        for rb in range(4):
            pack(k, acc(ja, rb), acc(jb, rb) if jb is not None else None)
        for rb in range(4):
            a = acc(ja, rb)
            if jb is not None:
                if rb == 0: k('s_nop 0')
                k(f'v_permlane16_swap_b32 v{a}, v{a+2}\nv_permlane16_swap_b32 v{a+1}, v{a+3}')
                k(f'buffer_store_dwordx4 v[{a}:{a+3}], v{VA+1}, s[{S_WS}:{S_WS+3}], s{SB+rb} offen offset:{off}')
            else:
                k(f'buffer_store_dwordx2 v[{a}:{a+1}], v{VA+2}, s[{S_WS}:{S_WS+3}], s{SB+rb} offen offset:{off + 256*hb}')
    k(f'{name}_{typ}_done:')
```

```python
from core128 import *
import k2
from k2 import G3, side, S_WS, S_SP, S_B, S_WAVE, S_AO, S_BO, S_TB, S_FB, S_IT, V_AD, V_BD, V_AR, V_BR, V_Z, V_BIAS, V_L16, V_T, V_LANE
S_X, S_NB, S_WO, S_W2, S_OUT = 16, 27, 48, 52, 56
S_WOFF, S_B0, S_FW, S_FU, S_FO, S_M0, S_XB, S_U0 = 60, 61, 63, 64, 65, 66, 68, 70
V_WA, V_WR, V_OA, V_FL, V_PO, V_PU, V_ONE, V_ZERO = 192, 208, 202, 203, 204, 205, 206, 207
RW = 16
V_X = 96
LOG2E = 1.4426950408889634
N2, N4 = 16, 28
NB = N2 + N4
def slot_base(s): return 8192 * s
L_Z = 131072
S_ZM, S_ZO, V_ZR = 72, 73, 216
def accB(st, ja, jb): return (0 if st < N2 else 32) + (ja * 2 + jb) * 4
def bfr(st, kk, jb): return (st & 7) * 16 + kk * 8 + jb * 4

def w_dma(st):
    sr = S_WO if st < N2 else S_W2
    ops = [('i', f's_add_u32 m0, s{S_M0}, {slot_base(st % RW)}')]
    if st == N2: ops.append(('i', f's_mov_b32 s{S_WOFF}, 0'))
    else: ops.append(('i', 's_nop 0'))
    ops += [('vm', f'buffer_load_dwordx4 v{V_WA+i}, s[{sr}:{sr+3}], s{S_WOFF} offen offset:{i*1024} lds', ('W', st)) for i in range(2)]
    ops.append(('i', f's_add_u32 s{S_WOFF}, s{S_WOFF}, {64*2048}'))
    return ops
def b_load(st):
    ops = []
    if st == N2: ops += [('i', f's_mov_b32 s{S_B0}, s{S_U0}\ns_mov_b32 s{S_B0+1}, s{S_U0+1}')]
    for jb in range(2):
        for kk in range(2):
            r = bfr(st, kk, jb)
            ops.append(('vm', f'buffer_load_dwordx4 a[{r}:{r+3}], v{V_L16}, s[{S_WS}:{S_WS+3}], s{S_B0+jb} offen offset:{kk*1024}', ('B', st)))
        ops.append(('i', f's_add_u32 s{S_B0+jb}, s{S_B0+jb}, 2048'))
    return ops
def w_read(st, kk):
    b = slot_base(st % RW); ops = []
    for ja in range(4):
        r = FA(kk, ja)
        for t in range(2):
            ops.append(('lds', f'ds_read_b64_tr_b16 v[{r+2*t}:{r+2*t+1}], v{V_WR + (b >> 16)*4 + ja} offset:{(b & 65535) + (2*kk + t)*2048}', ('A', st, kk, ja)))
    return ops
def poll(name, lab, va, sb):
    ld = f'buffer_load_dword v{V_FL}, v{va}, s[{S_WS}:{S_WS+3}], s{sb} offen sc1'
    chk = f'''v_cmp_eq_u32 vcc, 0, v{V_FL}
    s_mov_b32 s36, 0x40000
    s_nop 0
    s_cbranch_vccz {name}_{lab}_got
    {name}_{lab}_spin:
    {ld}
    s_waitcnt vmcnt(0)
    v_cmp_eq_u32 vcc, 0, v{V_FL}
    s_sub_u32 s36, s36, 1
    s_cbranch_scc1 {name}_{lab}_got
    s_cbranch_vccz {name}_{lab}_got
    s_sleep 2
    s_branch {name}_{lab}_spin
    {name}_{lab}_got:'''
    return ('vm', ld, 'F' + lab), [('wv', 'F' + lab), ('i', chk)]

class Jobs:
    def __init__(self, PS, wfirst):
        self.w = 0; self.b = 0; self.PS = PS; self.pend = []; self.wfirst = wfirst
    def next(self, wmax, bmax):
        if not self.pend:
            cw = self.w < NB and self.w <= wmax; cb = self.b < NB and self.b <= bmax
            if cw and (not cb or self.w <= self.b + self.wfirst):
                D = w_dma(self.w); self.w += 1
                self.pend = [([D[0]] + ([D[1]] if 'nop' not in D[1][1] else []), D[2], []), ([], D[3], [D[4]])]
            elif cb:
                L = b_load(self.b); self.b += 1
                p = [L.pop(0)] if L[0][0] == 'i' else []
                self.pend = [(p, L[0], []), ([], L[1], [L[2]]), ([], L[3], []), ([], L[4], [L[5]])]
            else: return None
        return self.pend.pop(0)

def stageB(st, J, extra, st2, POS):
    gaps = [[] for _ in range(16)]
    for n, r in enumerate(w_read(st, 1)): gaps[n].append(r)
    if st + 1 < NB:
        gaps[8] += [('wlv', [('A', st, 1, 3)], ('W', st + 1)), ('i', 's_barrier')]
        if st2 is not None:
            gaps[8].append(('i', f's_mov_b32 s87, m0\ns_mov_b32 m0, s86\ns_add_u32 s86, s86, 1\nv_writelane_b32 v{st2}, s84, m0\ns_memtime s[84:85]\ns_mov_b32 m0, s87'))
        R = w_read(st + 1, 0)
        for p, r in zip((8, 9, 10, 11, 12, 13, 14, 15), R): gaps[p].append(r)
    for p in POS:
        bmax = st + 7 if st >= J.PS else min(st + 7, N2 - 1)
        j = J.next(st + RW - (0 if p > 9 else 1), bmax)
        if j is None: continue
        gaps[p - 1] += j[0]; gaps[p] += [j[1]] + j[2]
    assert J.w > min(st + 2, NB - 1) and J.b > min(st + 1, NB - 1), (st, J.w, J.b)
    ops = []; seen = set()
    for m in range(16):
        kk = m >> 3; ja = (m >> 1) & 3; jb = m & 1
        if ja & 1: jb = 1 - jb
        if extra and ('pre', m) in extra: ops += extra[('pre', m)]
        if m == 0: ops.append(('wlv', [('A', st, 0, 0)], ('B', st)))
        elif (kk, ja) not in seen: ops.append(('wl', [('A', st, kk, ja)]))
        seen.add((kk, ja))
        d = accB(st, ja, jb); a = FA(kk, ja); b = bfr(st, kk, jb)
        c = '0' if (st in (0, N2) and kk == 0) else f'v[{d}:{d+3}]'
        ops.append(('i', f'v_mfma_f32_16x16x32_bf16 v[{d}:{d+3}], v[{a}:{a+3}], a[{b}:{b+3}], {c}'))
        ops += gaps[m]
        if extra and m in extra: ops += extra[m]
    return ops

def make_k23(name, opt):
    k = Kernel(name, 256, 256, 163840, vgpr=256 + 128, sgpr=96, accum=256)
    g = G3(); t = V_T; PS = opt.get('PS', 12); NPRE = opt.get('NPRE', 28); NEPI = opt.get('NEPI', 6)
    if opt.get('st2'): g.st2 = 190
    k(f'''
    s_cmp_ge_u32 s2, 256
    s_cbranch_scc1 {name}_end
    s_load_dwordx2 s[{S_WS}:{S_WS+1}], s[0:1], 80
    s_load_dwordx2 s[{S_SP}:{S_SP+1}], s[0:1], 40
    s_load_dwordx2 s[{S_B}:{S_B+1}], s[0:1], 48
    s_load_dwordx2 s[{S_X}:{S_X+1}], s[0:1], 0
    s_load_dwordx2 s[{S_WO}:{S_WO+1}], s[0:1], 16
    s_load_dwordx2 s[{S_W2}:{S_W2+1}], s[0:1], 56
    s_load_dwordx2 s[{S_OUT}:{S_OUT+1}], s[0:1], 64
    v_lshrrev_b32 v1, 6, v0
    v_and_b32 v{V_LANE}, 63, v0
    ''')
    srd(k, S_WS, 0, 0x10000000)
    k(f'v_readfirstlane_b32 s{S_WAVE}, v1')
    srd(k, S_SP, 0, 8 << 20); srd(k, S_B, 0, 4096); srd(k, S_X, 0, 4 << 20); srd(k, S_OUT, 0, 4 << 20)
    srd(k, S_WO, 0, 1024 * 2048); srd(k, S_W2, 0, 1792 * 2048)
    k(f'''
    v_lshlrev_b32 v{V_L16}, 4, v{V_LANE}
    v_add_u32 v{V_L16+1}, 4096, v{V_L16}
    s_lshr_b32 s30, s2, 3                   ; idx
    s_and_b32 s31, s2, 7                    ; xcd
    s_and_b32 s32, s31, 3
    s_lshl_b32 s32, s32, 2
    s_and_b32 s33, s30, 3
    s_add_u32 s{S_TB}, s32, s33
    s_lshr_b32 s32, s31, 2
    s_lshr_b32 s33, s30, 2
    s_lshl_b32 s34, s32, 3
    s_xor_b32 s35, s33, {opt.get('nbx', 0)}
    s_add_u32 s{S_NB}, s34, s35
    s_mul_i32 s32, s32, 7
    s_add_u32 s{S_FB}, s32, s33
    ''')
    setB = f'''
    v_lshrrev_b32 v{t}, 3, v{V_LANE}
    v_bfe_u32 v{t+1}, v{V_LANE}, 4, 2
    v_bfe_u32 v{t+2}, v{V_LANE}, 1, 2
    v_xor_b32 v{t+1}, v{t+1}, v{t+2}
    v_and_b32 v{t+2}, 1, v{V_LANE}
    v_lshlrev_b32 v{t+2}, 4, v{t+2}
    v_lshl_add_u32 v{t+1}, v{t+1}, 5, v{t+2}
    v_lshl_add_u32 v{t+1}, v{t}, 11, v{t+1}
    s_lshl_b32 s32, s{S_WAVE}, 15
    s_lshl_b32 s33, s{S_NB}, 7
    s_add_u32 s32, s32, s33
    v_add_u32 v{V_WA}, s32, v{t+1}
    v_add_u32 v{V_WA+1}, {16384 - 1024}, v{V_WA}
    s_mov_b32 s{S_WOFF}, 0
    s_lshl_b32 s{S_M0}, s{S_WAVE}, 11
    '''
    if opt.get('wlin'): setB += f'''
    s_lshl_b32 s33, s{S_NB}, 13
    s_add_u32 s32, s33, s{S_M0}
    v_add_u32 v{V_WA}, s32, v{V_L16}
    v_mov_b32 v{V_WA+1}, v{V_WA}
    '''
    setB += f'''
    v_lshrrev_b32 v{t}, 2, v{V_LANE}
    v_bfe_u32 v{t+1}, v{V_LANE}, 3, 2
    v_and_b32 v{t+2}, 3, v{V_LANE}
    v_lshlrev_b32 v{t+2}, 3, v{t+2}
    v_lshl_add_u32 v{t+2}, v{t}, 7, v{t+2}
    '''
    for j in range(4):
        setB += f'''v_xor_b32 v{t+4}, {j}, v{t+1}
        v_lshl_add_u32 v{V_WR+j}, v{t+4}, 5, v{t+2}
        v_add_u32 v{V_WR+4+j}, 0x10000, v{V_WR+j}
        '''
    setB += f'''
    s_lshl_b32 s32, s{S_TB}, 3
    s_lshl_b32 s33, s{S_WAVE}, 1
    s_add_u32 s32, s32, s33
    s_lshl_b32 s33, s32, 15
    s_add_u32 s{S_B0}, s33, {WS_O}
    s_add_u32 s{S_B0+1}, s{S_B0}, 32768
    s_mul_i32 s34, s32, 57344
    s_add_u32 s{S_U0}, s34, {WS_U}
    s_add_u32 s{S_U0+1}, s{S_U0}, 57344
    s_lshl_b32 s34, s{S_NB}, 7
    s_add_u32 s{S_XB}, s33, s34
    s_add_u32 s{S_XB+1}, s{S_XB}, 32768
    v_and_b32 v{t}, 15, v{V_LANE}
    v_bfe_u32 v{t+1}, v{V_LANE}, 4, 1
    v_lshlrev_b32 v{t+1}, 5, v{t+1}
    v_lshl_add_u32 v{t}, v{t}, 11, v{t+1}
    v_lshrrev_b32 v{t+1}, 5, v{V_LANE}
    v_lshl_add_u32 v{V_OA}, v{t+1}, 4, v{t}
    s_lshl_b32 s{S_ZM}, s{S_WAVE}, 13
    s_add_u32 s{S_ZM}, s{S_ZM}, {L_Z}
    v_add_u32 v{V_ZR}, s{S_ZM}, v{V_L16}
    ; flags
    v_min_u32 v{V_PO}, 31, v{V_LANE}
    v_lshlrev_b32 v{V_PO}, 2, v{V_PO}
    v_min_u32 v{V_PU}, 27, v{V_LANE}
    v_lshlrev_b32 v{V_PU}, 2, v{V_PU}
    v_mov_b32 v{V_ONE}, 1
    v_mov_b32 v{V_ZERO}, 0
    s_lshr_b32 s32, s{S_TB}, 2
    s_lshl_b32 s32, s32, 7
    s_add_u32 s{S_FO}, s32, {WS_FLAG + 4096}
    s_lshl_b32 s32, s{S_TB}, 8
    s_add_u32 s32, s32, {WS_FLAG}
    s_lshr_b32 s33, s{S_WAVE}, 1
    s_lshl_b32 s34, s33, 7
    s_add_u32 s{S_FU}, s32, s34
    s_lshl_b32 s33, s33, 2
    s_add_u32 s32, s32, s33
    s_and_b32 s33, s{S_WAVE}, 1
    s_lshl_b32 s33, s33, 7
    s_add_u32 s32, s32, s33
    s_lshl_b32 s33, s{S_FB}, 3
    s_add_u32 s{S_FW}, s32, s33
    '''
    flag_store = lambda s: f's_mov_b64 exec, 1\nbuffer_store_dword v{V_ONE}, v{V_ZERO}, s[{S_WS}:{S_WS+3}], s{s} offen sc1\ns_mov_b64 exec, -1'
    J = Jobs(PS, opt.get('WF', 1))
    pre = [J.next(7, 7) for _ in range(NPRE + NEPI)]
    while J.pend: pre.append(J.next(7, 7))
    preB = sum([a + ([('i', 's_nop 0')] if a else []) + [v] + c for a, v, c in pre], [])
    k(f'''s_cmp_lt_u32 s30, 28
    s_cbranch_scc1 {name}_main
    s_lshl_b32 s31, s31, 2
    s_add_u32 s37, s31, s30
    s_sub_u32 s37, s37, 28
    s_waitcnt lgkmcnt(0)
    ''')
    stamp(k, opt, 0, S_WS, t)
    if opt.get('stamp'): k('s_waitcnt vmcnt(0)')
    side(k, name, opt, head=37, sc=opt.get('osc', ' sc1'))
    k(setB)
    k(f'''s_lshl_b32 s32, s{S_WAVE}, 7
    s_lshl_b32 s33, s37, 2
    s_add_u32 s32, s32, s33
    s_add_u32 s32, s32, {WS_FLAG + 4096}
    s_mov_b32 s{S_FW}, {WS_FLAG + 8192}
    s_waitcnt vmcnt(0)''')
    k(flag_store(32))
    if opt.get('ct2', 1):
        k('\n'.join(code_touch(f'{name}_end - 32768', S_WAVE, V_LANE, 220, f'{name}_pc', neg=True)) + '\nglobal_load_dword v222, v[220:221], off')
    if opt.get('pfo', 0) + opt.get('pfw', 0):
        k(f'''s_sub_u32 s32, s30, 28
        s_lshl_b32 s32, s32, 2
        s_add_u32 s32, s32, s{S_WAVE}
        s_lshl_b32 s32, s32, 14
        s_bfe_u32 s33, s2, 0x10002
        s_lshl_b32 s33, s33, 10
        s_add_u32 s32, s32, s33
        v_lshrrev_b32 v223, 3, v{V_LANE}
        v_and_b32 v224, 7, v{V_LANE}
        v_lshlrev_b32 v224, 7, v224
        v_lshl_add_u32 v223, v223, 11, v224''')
        for sr, N in ((S_WO, opt.get('pfo', 0)), (S_W2, opt.get('pfw', 0))):
            for n in range(N): k(f's_add_u32 s33, s32, {n*262144}\nbuffer_load_dword v222, v223, s[{sr}:{sr+3}], s33 offen')
    stamp(k, opt, 1, S_WS, t + 4)
    ld, chk = poll(name, 'os', V_PO, S_FO)
    tx, _ = resolve([ld] + chk + preB, Q())
    k('\n'.join(tx))
    if g.st2 is not None: k('s_mov_b32 s86, 32\ns_mov_b32 s84, 0')
    stamp(k, opt, 2, S_WS, t + 4)
    k(f's_waitcnt vmcnt(0)\ns_branch {name}_J\n{name}_main:')
    k2.g3_setup(k, g)
    if opt.get('splin'):
        k(f'''s_lshl_b32 s32, s{S_TB}, 14
        s_lshl_b32 s33, s{S_WAVE}, 12
        s_add_u32 s32, s32, s33
        v_add_u32 v{V_BD}, s32, v{V_L16}
        v_mov_b32 v{V_BD+1}, v{V_BD}
        v_mov_b32 v{V_BD+2}, v{V_BD}
        v_mov_b32 v{V_BD+3}, v{V_BD}''')
        g.inc_b = lambda: [('i', f's_add_u32 s{S_BO}, s{S_BO}, 262144')]
    stamp(k, opt, 0, S_WS, t)
    if opt.get('stamp'): k('s_waitcnt vmcnt(0)')
    mid = [('i', setB), ('i', k2.g3_mid()), ('i', f's_mov_b32 s{S_ZO}, s44')]
    zl = k2.g3_zloads()
    ld, chk = poll(name, 'o', V_PO, S_FO)
    ex = {27: {3: [ld]}, 28: {16: chk}, 29: {}, 30: {}, 31: {}}
    for n in range(4): ex[27].setdefault(5 + 2 * n, []).append(zl[n])
    pos = [(28, m) for m in (19, 23, 27, 31)] + [(st, m) for st in (29, 30, 31) for m in (2, 6, 10, 14, 19, 23, 27, 31)]
    for n in range(8):
        ex[31].setdefault(16 + 2 * n, []).append(('lds', f'ds_read_b128 v[{V_Z+4*n}:{V_Z+4*n+3}], v{V_ZR} offset:{n*1024}', 'Zl'))
    zlab = name + '_zskip'
    g.loop_extra = {2: {16: [('i', f'''s_cmp_gt_u32 s{S_IT}, 4
    s_cbranch_scc1 {zlab}
    s_mov_b32 m0, s{S_ZM}
    s_add_u32 s{S_ZM}, s{S_ZM}, 2048
    buffer_load_dwordx4 v{V_L16}, s[{S_WS}:{S_WS+3}], s{S_ZO} offen lds
    buffer_load_dwordx4 v{V_L16}, s[{S_WS}:{S_WS+3}], s{S_ZO} offen offset:1024 lds
    s_add_u32 s{S_ZO}, s{S_ZO}, 57344
    {zlab}:''')]}}
    for (st, m), (a, v, c) in zip(pos, pre[:NPRE]):
        ex[st].setdefault(m - 1, []).extend(a); ex[st].setdefault(m, []).extend([v] + c)
    q = Q()
    g.run(k, 32, q, mid, ex, S_IT, (lambda: stamp(k, opt, 1, S_WS, t + 4)) if opt.get('stamp') else None)
    if opt.get('stamp'): stamp(k, opt, 2, S_WS, t + 4); q.v.append('st')
    epi = []; rest = pre[NPRE:]
    for o in [('wl', 'Zl')] + k2.g3_epi(' sc1'):
        if o[0] == 'vm' and rest:
            a, v, c = rest.pop(0); epi += a + ([('i', 's_nop 0')] if a else []) + [v] + c
        epi.append(o)
    assert not rest
    tx, _ = resolve(epi, q)
    k('\n'.join(tx))
    k(f'{name}_J:')
    if opt.get('stamp'): stamp(k, opt, 3, S_WS, t + 4); q.v.append('st')
    if g.st2 is not None: g.st2_out(k, opt, S_WS, V_L16); q.v.append('st'); k('s_mov_b32 s86, 0')
    ops = [('wv', ('W', 0)), ('i', 's_barrier')] + w_read(0, 0)
    for _ in range(opt.get('NJ', 12)):
        j = J.next(RW - 1, 7)
        if j is None: break
        a, v, c = j; ops += a + ([('i', 's_nop 0')] if a else []) + [v] + c
    ld, chk = poll(name, 'u', V_PU, S_FU)
    exB = {opt.get('FS', 1): {15: [('wv', 'U'), ('vm', flag_store(S_FW), 'FS')]}}
    exB.setdefault(PS - opt.get('FD', 2), {})[2] = [ld]
    exB.setdefault(PS, {})[('pre', 0)] = chk
    xl = [('vm', f'buffer_load_dwordx4 v[{V_X+4*n}:{V_X+4*n+3}], v{V_OA}, s[{S_X}:{S_X+3}], s{S_XB + (n >> 1)} offen offset:{(n & 1)*64}', 'X') for n in range(4)]
    exB[NB - 4] = {2 * n + 1: [xl[n]] for n in range(4)}
    for st in range(NB): ops += stageB(st, J, exB.get(st), g.st2, opt.get('POS', (1, 4, 7, 10, 13, 15)))
    ops.append(('wv', 'X'))
    tx, _ = resolve(ops, q)
    k('\n'.join(tx))
    stamp(k, opt, 4, S_WS, t + 4)
    if g.st2 is not None:
        g.st2_out(k, dict(opt, stamp_slot=3), S_WS, V_L16)
    k(f'v_mov_b32 v{t}, {f2u(-LOG2E):#x}\ns_nop 6')
    for jb in range(2):
        for P in range(2):
            n = jb * 2 + P; a, b = accB(N2, 2 * P, jb), accB(N2, 2 * P + 1, jb)
            T = 112 + (n & 1) * 16; W = T + 8
            H = [a, a + 2, b, b + 2]
            for i, p in enumerate(H): k(f'v_pk_mul_f32 v[{T+2*i}:{T+2*i+1}], v[{p}:{p+1}], v[{t}:{t+1}] op_sel_hi:[1,0]')
            for i in range(8): k(f'v_exp_f32 v{T+i}, v{T+i}')
            for i, p in enumerate(H):
                k(f'v_pk_mul_f32 v[{p}:{p+1}], v[{p}:{p+1}], v[{p-32}:{p-31}]')
                k(f'v_pk_add_f32 v[{T+2*i}:{T+2*i+1}], v[{T+2*i}:{T+2*i+1}], 1.0 op_sel_hi:[1,0]')
            for i in range(8): k(f'v_rcp_f32 v{T+i}, v{T+i}')
            for i, p in enumerate(H):
                k(f'v_lshlrev_b32 v{W+2*i}, 16, v{V_X+4*n+i}')
                k(f'v_pk_mul_f32 v[{p}:{p+1}], v[{p}:{p+1}], v[{T+2*i}:{T+2*i+1}]')
            for i in range(4): k(f'v_and_b32 v{W+2*i+1}, 0xffff0000, v{V_X+4*n+i}')
            for r in range(4): k(f'v_permlane16_swap_b32 v{a+r}, v{b+r}')
            for i, p in enumerate(H): k(f'v_pk_add_f32 v[{p}:{p+1}], v[{p}:{p+1}], v[{W+2*i}:{W+2*i+1}]')
            for i, p in enumerate(H): k(f'v_cvt_pk_bf16_f32 v{V_X+4*n+i}, v{p}, v{p+1}')
            k(f'buffer_store_dwordx4 v[{V_X+4*n}:{V_X+4*n+3}], v{V_OA}, s[{S_OUT}:{S_OUT+3}], s{S_XB+jb} offen offset:{P*64}')
    stamp(k, opt, 5, S_WS, t + 4)
    k(f'{name}_end:\ns_endpgm')
    return k
```

```python
from asmlib import *
from sched import *
WS_XN = 0
WS_PQ = 4 << 20
WS_O = 8 << 20
WS_Z1 = 12 << 20
WS_Z2 = 20 << 20
WS_U = 28 << 20
WS_KVP = 36 << 20
WS_ST = 38 << 20
WS_FLAG = 39 << 20
WS_S = 40 << 20
WS_RAW = 64 << 20
WS_RES = 128 << 20

def srd(k, s, slot, size):
    k(f's_mov_b32 s{s+2}, {size}\ns_mov_b32 s{s+3}, 0x20000')

def f2u(x):
    import struct
    return struct.unpack('<I', struct.pack('<f', x))[0]

def round_bf16(k, v, tmp=None):
    k(f'v_cvt_pk_bf16_f32 v{v}, v{v}, v{v}\nv_lshlrev_b32 v{v}, 16, v{v}')

def ln_finish(k, vs, vq, n, vt):
    k(f'''
    v_mul_f32 v{vs}, {f2u(1.0/n):#x}, v{vs}
    v_mul_f32 v{vq}, {f2u(1.0/n):#x}, v{vq}
    v_fma_f32 v{vq}, -v{vs}, v{vs}, v{vq}
    v_max_f32 v{vq}, 0, v{vq}
    ''')
    round_bf16(k, vq)
    k(f'v_add_f32 v{vq}, {f2u(1e-5):#x}, v{vq}')
    round_bf16(k, vq)
    k(f'v_sqrt_f32 v{vq}, v{vq}')
    round_bf16(k, vs)
    round_bf16(k, vq)
    k(f'v_rcp_f32 v{vq}, v{vq}\ns_nop 0')

def stamp_begin(k, opt, s0=90):
    if opt.get('stamp'): k(f's_memrealtime s[{s0}:{s0+1}]')

def stamp(k, opt, idx, sws, vt, s0=88):
    if not opt.get('stamp'): return
    assert vt % 2 == 0
    k(f'''s_memrealtime s[{s0}:{s0+1}]
    s_memtime s[{s0+2}:{s0+3}]
    s_waitcnt lgkmcnt(0)
    v_mov_b32 v{vt}, s{s0}
    v_mov_b32 v{vt+1}, s{s0+2}
    s_lshl_b32 s{s0+1}, s2, 6
    s_add_u32 s{s0+1}, s{s0+1}, {WS_RES + opt['stamp_slot'] * 16384 + idx * 8}
    buffer_store_dwordx2 v[{vt}:{vt+1}], off, s[{sws}:{sws+3}], s{s0+1}''')

def code_touch(label, swave, vlane, va, uid, first=0, s0=94, st=34, neg=False):
    return [f's_getpc_b64 s[{s0}:{s0+1}]\n{uid}:\ns_add_u32 s{s0}, s{s0}, {label} - {uid}\ns_addc_u32 s{s0+1}, s{s0+1}, {-1 if neg else 0}',
            f'v_lshlrev_b32 v{va}, 7, v{vlane}', f's_sub_u32 s{st}, s{swave}, {first}\ns_max_i32 s{st}, s{st}, 0\nv_mov_b32 v{va+1}, s{st}', f'v_lshl_add_u32 v{va}, v{va+1}, 13, v{va}', f'v_mov_b32 v{va+1}, s{s0+1}',
            f'v_add_co_u32 v{va}, vcc, s{s0}, v{va}', f'v_addc_co_u32 v{va+1}, vcc, 0, v{va+1}, vcc']

def start_touch(k, uid, lab0, lab1=None, sel=None, va=10, vd=None):
    k(f'''s_getpc_b64 s[94:95]
    {uid}:
    v_and_b32 v{va+1}, 63, v0
    v_lshrrev_b32 v{va}, 6, v0
    v_min_u32 v{va+1}, 23, v{va+1}
    v_mad_u32_u24 v{va}, v{va}, 24, v{va+1}''')
    if lab1: k(f's_bitcmp1_b32 s2, {sel}\ns_cselect_b32 s93, {lab1} - {uid}, 0\ns_add_u32 s94, s94, s93\ns_addc_u32 s95, s95, 0')
    k(f'''v_lshlrev_b32 v{va}, 7, v{va}
    v_mov_b32 v{va+1}, s95
    v_add_co_u32 v{va}, vcc, s94, v{va}
    v_addc_co_u32 v{va+1}, vcc, 0, v{va+1}, vcc
    global_load_dword v{vd or va+2}, v[{va}:{va+1}], off''')
```

```python
from common import *
from k1 import acc, S_WS, S_WAVE, S_RG, S_CG, S_P
import math
VC = 208
VT = 212
VK = 220
VS = 228
VA = 244
SB = 60
LOG2E = 1.4426950408889634
C1 = -2.0 * math.sqrt(2.0 / math.pi) * LOG2E
C2 = C1 * 0.044715

def pairs(regs4):
    return [r + o for r in regs4 for o in (0, 2)]

def gelu(k, regs4, rbs, stats_rb=None, first=False):
    P = pairs(regs4); T = [VT + 2 * i for i in range(len(P))]; R = [rb for rb in rbs for _ in range(2)]
    for p, t in zip(P, T): k(f'v_pk_mul_f32 v[{t}:{t+1}], v[{p}:{p+1}], v[{p}:{p+1}]')
    for rb, t in zip(R, T): k(f'v_pk_fma_f32 v[{t}:{t+1}], v[{t}:{t+1}], v[{VK+2*rb}:{VK+2*rb+1}], v[{VK+2*rb}:{VK+2*rb+1}] op_sel:[0,0,1] op_sel_hi:[1,0,1]')
    for p, t in zip(P, T): k(f'v_pk_mul_f32 v[{t}:{t+1}], v[{t}:{t+1}], v[{p}:{p+1}]')
    for t in T: k(f'v_exp_f32 v{t}, v{t}\nv_exp_f32 v{t+1}, v{t+1}')
    for rb, t in zip(R, T):
        c, h = riop(rb)
        k(f'v_pk_fma_f32 v[{t}:{t+1}], v[{t}:{t+1}], v[{c}:{c+1}], v[{c}:{c+1}] op_sel:[0,{h},{h}] op_sel_hi:[1,{h},{h}]')
    for t in T: k(f'v_rcp_f32 v{t}, v{t}\nv_rcp_f32 v{t+1}, v{t+1}')
    for p, t in zip(P, T): k(f'v_pk_mul_f32 v[{p}:{p+1}], v[{p}:{p+1}], v[{t}:{t+1}]')
    if stats_rb is not None:
        s = VS + 2 * stats_rb; q = VS + 8 + 2 * stats_rb
        for n, p in enumerate(P):
            if first and n == 0:
                k(f'v_pk_mul_f32 v[{q}:{q+1}], v[{p}:{p+1}], v[{p}:{p+1}]')
            elif first and n == 1:
                k(f'v_pk_add_f32 v[{s}:{s+1}], v[{P[0]}:{P[0]+1}], v[{p}:{p+1}]')
                k(f'v_pk_fma_f32 v[{q}:{q+1}], v[{p}:{p+1}], v[{p}:{p+1}], v[{q}:{q+1}]')
            else:
                k(f'v_pk_add_f32 v[{s}:{s+1}], v[{s}:{s+1}], v[{p}:{p+1}]')
                k(f'v_pk_fma_f32 v[{q}:{q+1}], v[{p}:{p+1}], v[{p}:{p+1}], v[{q}:{q+1}]')

def phi(k, regs4, rb=None, RL=None, RQ=None):
    P = pairs(regs4); T = [VT + 2 * i for i in range(len(P))]
    c = VC + 2
    if rb is not None:
        g = VK + 2 * rb
        for p, t in zip(P, T): k(f'v_pk_mul_f32 v[{t}:{t+1}], v[{p}:{p+1}], v[{g}:{g+1}] op_sel_hi:[1,0]')
        for p in P: k(f'v_pk_fma_f32 v[{p}:{p+1}], v[{p}:{p+1}], v[{g}:{g+1}], 1.0 op_sel:[0,1,0] op_sel_hi:[1,1,0]')
    else:
        for i, (p, t) in enumerate(zip(P, T)): k(f'v_pk_mul_f32 v[{t}:{t+1}], v[{p}:{p+1}], v[{RL+2*i}:{RL+2*i+1}]')
        for i, p in enumerate(P): k(f'v_pk_fma_f32 v[{p}:{p+1}], v[{p}:{p+1}], v[{RQ+2*i}:{RQ+2*i+1}], 1.0 op_sel_hi:[1,1,0]')
    for t in T: k(f'v_exp_f32 v{t}, v{t} clamp\nv_exp_f32 v{t+1}, v{t+1} clamp')
    for p, t in zip(P, T): k(f'v_max_f32 v{p}, v{p}, v{t}\nv_max_f32 v{p+1}, v{p+1}, v{t+1}')
    for p in P: k(f'v_pk_add_f32 v[{p}:{p+1}], v[{p}:{p+1}], v[{c}:{c+1}] op_sel:[0,1] op_sel_hi:[1,1]')

def pack(k, a, b=None):
    k(f'v_cvt_pk_bf16_f32 v{a}, v{a}, v{a+1}\nv_cvt_pk_bf16_f32 v{a+1}, v{a+2}, v{a+3}')
    if b is not None:
        k(f'v_cvt_pk_bf16_f32 v{a+2}, v{b}, v{b+1}\nv_cvt_pk_bf16_f32 v{a+3}, v{b+2}, v{b+3}')

def win_groups(typ):
    if typ == 'E': return [(8, 9, 0, None), (10, 11, 1024, None), (12, None, 2048, 0)]
    return [(5, 6, 0, None), (7, 8, 1024, None), (9, 10, 2048, None), (11, 12, 3072, None), (4, None, 0, 1)]

def bases(k, s0, ws, ncp, cp_sgpr):
    k(f'''s_lshl_b32 s34, s{S_RG}, 4
    s_lshl_b32 s35, s{S_WAVE}, 2
    s_add_u32 s34, s34, s35
    s_mul_i32 s34, s34, {ncp}
    s_add_u32 s34, s34, s{cp_sgpr}
    s_lshl_b32 s34, s34, 10
    s_add_u32 s{s0}, s34, {ws}''')
    for rb in range(1, 4): k(f's_add_u32 s{s0+rb}, s{s0}, {rb*ncp*1024}')

def riop(rb):
    return (VC if rb < 2 else 252), rb & 1

def lnfix(K, k, blocks, mode):
    A0, A1 = 250, 251
    k(f's_lshl_b32 s34, s{S_WAVE}, 9\ns_add_u32 s34, s34, {K.L_RS}')
    if mode != 'kv':
        NM, RR, CQ = 212, 216, 220
        k(f'''v_and_b32 v{A0}, 15, v255
        v_lshl_add_u32 v{A0}, v{A0}, 2, s34
        v_and_b32 v{A1}, 48, v255
        v_add_u32 v{A1}, {K.L_CS}, v{A1}''')
        rd = lambda n: k(f'ds_read_b128 v[{CQ+8*(n%3)}:{CQ+8*(n%3)+3}], v{A1} offset:{64*blocks[n]}\nds_read_b128 v[{CQ+8*(n%3)+4}:{CQ+8*(n%3)+7}], v{A1} offset:{64*blocks[n]+1024}')
        for h in range(2): k(f'ds_read2_b32 v[{NM+2*h}:{NM+2*h+1}], v{A0} offset0:{64+32*h} offset1:{64+32*h+16}')
        for h in range(2): k(f'ds_read2_b32 v[{RR+2*h}:{RR+2*h+1}], v{A0} offset0:{32*h} offset1:{32*h+16}')
        rd(0); rd(1)
        N = len(blocks)
        for n, j in enumerate(blocks):
            if n + 2 < N: rd(n + 2)
            k(f's_waitcnt lgkmcnt({2 * min(2, N - 1 - n)})')
            c = CQ + 8 * (n % 3)
            for o in (0, 2): k(f'v_pk_add_f32 v[{c+o}:{c+o+1}], v[{c+o}:{c+o+1}], v[{c+4+o}:{c+5+o}]')
            for rb in range(4):
                for o in (0, 2):
                    p = acc(j, rb) + o; m = NM + (rb & 2)
                    k(f'v_pk_fma_f32 v[{p}:{p+1}], v[{c+o}:{c+o+1}], v[{m}:{m+1}], v[{p}:{p+1}] op_sel:[0,{rb&1},0] op_sel_hi:[1,{rb&1},1]')
        if mode == 'gelu':
            for rb in range(4): k(f'v_mul_f32 v{NM+rb}, v{RR+rb}, v{RR+rb}')
            for rb in range(4): k(f'v_mul_f32 v{VK+2*rb}, {f2u(C2):#x}, v{RR+rb}\nv_mul_f32 v{VK+2*rb+1}, {f2u(C1):#x}, v{RR+rb}')
            for rb in range(4): k(f'v_mul_f32 v{VK+2*rb}, v{VK+2*rb}, v{NM+rb}\nv_rcp_f32 v{riop(rb)[0]+riop(rb)[1]}, v{RR+rb}')
        else:
            for rb in range(4): k(f'v_mul_f32 v{VK+2*rb}, {f2u(LOG2E):#x}, v{RR+rb}\nv_mov_b32 v{VK+2*rb+1}, v{RR+rb}')
    else:
        T, CS, NQ = 212, 220, 228
        k(f'''v_and_b32 v{A0}, 48, v255
        v_add_u32 v{A0}, s34, v{A0}
        v_and_b32 v{A1}, 15, v255
        v_lshlrev_b32 v{A1}, 2, v{A1}
        v_add_u32 v{A1}, {K.L_CS}, v{A1}''')
        for n in range(4): k(f'ds_read2_b32 v[{CS+2*n}:{CS+2*n+1}], v{A1} offset0:{32*n} offset1:{32*n+16}')
        k(f'v_add_u32 v{A1}, 1024, v{A1}')
        for n in range(4): k(f'ds_read2_b32 v[{T+2*n}:{T+2*n+1}], v{A1} offset0:{32*n} offset1:{32*n+16}')
        for rb in range(4): k(f'ds_read_b128 v[{NQ+4*rb}:{NQ+4*rb+3}], v{A0} offset:{64*rb+256}')
        k('s_waitcnt lgkmcnt(3)')
        for n in range(4): k(f'v_pk_add_f32 v[{CS+2*n}:{CS+2*n+1}], v[{CS+2*n}:{CS+2*n+1}], v[{T+2*n}:{T+2*n+1}]')
        for rb in range(4):
            if rb: k(f's_waitcnt lgkmcnt({3 if rb < 3 else 2})')
            for j in range(8):
                for o in (0, 2):
                    p = acc(j, rb) + o; c = CS + (j & 6)
                    k(f'v_pk_fma_f32 v[{p}:{p+1}], v[{NQ+4*rb+o}:{NQ+4*rb+o+1}], v[{c}:{c+1}], v[{p}:{p+1}] op_sel:[0,{j&1},0] op_sel_hi:[1,{j&1},1]')
            k(f'ds_read_b128 v[{NQ+4*rb}:{NQ+4*rb+3}], v{A0} offset:{64*rb}')
        k('s_waitcnt lgkmcnt(0)')

def spec(k, part, K, step):
    class B:
        L = []
        def __call__(s, x): s.L += [l for l in x.split('\n') if l.strip()]
    b = B(); b.L = []; part(K, b, True)
    m = b.L.index(';spec'); out = b.L[:m] + ['s_mov_b32 s54, s37']; c = 0; last = 0
    for n, l in enumerate(b.L[m + 1:]):
        if n % step == 0 and c < 16:
            out.append(f'buffer_load_dwordx2 a[{2*c}:{2*c+1}], v{VA+3}, s[{S_WS}:{S_WS+3}], s54 offen sc1\ns_add_u32 s54, s54, 16384'); c += 1; last = len(out)
        out.append(l)
    assert c == 16
    k('\n'.join(out))
    return sum('buffer_' in l for l in out[last:])

def qpart(K, k, z2=False):
    lnfix(K, k, [0, 1, 2, 3], 'q')
    k(f's_lshl_b32 s36, s{S_P}, 1')
    bases(k, SB + 4, WS_PQ, 32, 36)
    n = 0
    for hh in range(2):
        for rb in range(4):
            if z2 and hh * 4 + rb == K.opt.get('spq', 2): k(';spec')
            a, b = acc(2 * hh, rb), acc(2 * hh + 1, rb)
            phi(k, [a, b], rb)
            pack(k, a, b)
            k(f'buffer_store_dwordx4 v[{a}:{a+3}], v{VA}, s[{S_WS}:{S_WS+3}], s{SB+4+rb} offen offset:{hh*1024}')

def kvpart(K, k, z2=False):
    lnfix(K, k, list(range(8)), 'kv')
    n = 0
    for ks in range(2):
        RQ = 228 + 8 * ks
        for i in range(4): k(f'v_pk_mul_f32 v[{VK+2*i}:{VK+2*i+1}], v[{RQ+2*i}:{RQ+2*i+1}], v[{VC+2}:{VC+3}] op_sel_hi:[1,0]')
        for j in range(4, 8):
            for i, p in enumerate(pairs([acc(j, 2 * ks), acc(j, 2 * ks + 1)])): k(f'v_pk_mul_f32 v[{p}:{p+1}], v[{p}:{p+1}], v[{RQ+2*i}:{RQ+2*i+1}]')
            pack(k, acc(j, 2 * ks), acc(j, 2 * ks + 1))
        if z2 and ks == 1: k(';spec')
        for j in range(4):
            a, b = acc(j, 2 * ks), acc(j, 2 * ks + 1)
            phi(k, [a, b], None, VK, RQ)
            pack(k, a, b)
    free = [acc(j, rb) for j in range(8) for rb in (1, 3)]
    ones = free[12]
    for r in range(4): k(f'v_mov_b32 v{ones+r}, 0x3f803f80')
    k('s_nop 1')
    blocks = []
    for hh in range(2):
        for db in range(2):
            for eb in range(3): blocks.append((hh, db, eb))
    for ks in range(2):
        for n, (hh, db, eb) in enumerate(blocks):
            d = free[n]; a = acc(2 * hh + db, 2 * ks)
            b = acc(4 + 2 * hh + eb, 2 * ks) if eb < 2 else ones
            c = f'v[{d}:{d+3}]' if ks else '0'
            k(f'v_mfma_f32_16x16x32_bf16 v[{d}:{d+3}], v[{a}:{a+3}], v[{b}:{b+3}], {c}')
    k(f'''s_mul_i32 s34, s{S_WAVE}, {K.KVS}
    s_add_u32 s34, s34, {K.L_KV}
    v_add_u32 v{VA+4}, s34, v{VA}
    s_mul_i32 s34, s{S_WAVE}, 3072
    s_add_u32 s34, s34, {K.L_KV}
    v_add_u32 v{VA+5}, s34, v{VA}
    v_add_u32 v250, {2*K.KVS}, v{VA+5}
    s_nop 1''')
    for n in range(12):
        k(f'ds_write_b128 v{VA+4}, v[{free[n]}:{free[n]+3}] offset:{n*1024}')
    k('s_waitcnt lgkmcnt(0)\ns_barrier')
    tmp = [acc(j, 0) for j in range(8)] + [acc(j, 2) for j in range(4)]
    for n in range(3):
        for w in range(4):
            t = tmp[n * 4 + w]
            k(f'ds_read_b128 v[{t}:{t+3}], v{VA+5 if w < 2 else 250} offset:{(w%2)*K.KVS + n*1024}')
    k(f'''s_lshl_b32 s34, s{S_RG}, 5
    s_lshl_b32 s35, s{S_P}, 1
    s_add_u32 s34, s34, s35
    s_mul_i32 s34, s34, 6
    s_mul_i32 s35, s{S_WAVE}, 3
    s_add_u32 s34, s34, s35
    s_lshl_b32 s34, s34, 10
    s_add_u32 s34, s34, {WS_KVP}''')
    for n in range(3):
        t = tmp[n * 4:n * 4 + 4]
        k(f's_waitcnt lgkmcnt({8 - 4*n})')
        for o in (0, 2):
            k(f'v_pk_add_f32 v[{t[0]+o}:{t[0]+o+1}], v[{t[0]+o}:{t[0]+o+1}], v[{t[1]+o}:{t[1]+o+1}]')
            k(f'v_pk_add_f32 v[{t[2]+o}:{t[2]+o+1}], v[{t[2]+o}:{t[2]+o+1}], v[{t[3]+o}:{t[3]+o+1}]')
        for o in (0, 2):
            k(f'v_pk_add_f32 v[{t[0]+o}:{t[0]+o+1}], v[{t[0]+o}:{t[0]+o+1}], v[{t[2]+o}:{t[2]+o+1}]')
        k(f'buffer_store_dwordx4 v[{t[0]}:{t[0]+3}], v{VA}, s[{S_WS}:{S_WS+3}], s34 offen offset:{n*1024}')

def epilogue(K, typ):
    k = K.k; name = K.name
    G = win_groups(typ)
    k(f'''
    v_mov_b32 v{VC+2}, {f2u(LOG2E):#x}
    v_mov_b32 v{VC+3}, {f2u(1e-6):#x}
    v_lshlrev_b32 v{VA}, 4, v255
    s_and_b32 s36, s{S_P}, 7
    s_mul_i32 s36, s36, 7
    ''')
    if typ == 'O': k('s_add_u32 s36, s36, 2')
    lnfix(K, k, [j for g in G for j in g[:2] if j is not None], 'gelu')
    stamp(k, K.opt, 7, S_WS, 250)
    k(f's_cmp_ge_u32 s{S_P}, 8\ns_cbranch_scc1 {name}_{typ}_z2')
    bases(k, SB, WS_Z1, 56, 36)
    k(f'v_add_u32 v{VA+1}, {1024 if typ == "O" else 0}, v{VA}')
    n = 0
    for (ja, jb, off, hb) in G:
        if jb is not None:
            for rb in range(4):
                a, b = acc(ja, rb), acc(jb, rb)
                gelu(k, [a, b], [rb, rb])
                pack(k, a, b)
                k(f'buffer_store_dwordx4 v[{a}:{a+3}], v{VA+1}, s[{S_WS}:{S_WS+3}], s{SB+rb} offen offset:{off}')
        else:
            for rb in (0, 2):
                a, b = acc(ja, rb), acc(ja, rb + 1)
                gelu(k, [a, b], [rb, rb + 1])
                pack(k, a); pack(k, b)
                k(f'buffer_store_dwordx2 v[{a}:{a+1}], v{VA}, s[{S_WS}:{S_WS+3}], s{SB+rb} offen offset:{off + 8*hb}')
                k(f'buffer_store_dwordx2 v[{b}:{b+1}], v{VA}, s[{S_WS}:{S_WS+3}], s{SB+rb+1} offen offset:{off + 8*hb}')
    stamp(k, K.opt, 3, S_WS, 250)
    if typ == 'O': qpart(K, k)
    else: kvpart(K, k)
    stamp(k, K.opt, 4, S_WS, 250)
    stamp(k, K.opt, 5, S_WS, 250)
    k(f's_branch {name}_{typ}_done')
    k(f'{name}_{typ}_z2:')
    bases(k, SB, WS_Z2, 56, 36)
    n = 0
    for gi, (ja, jb, off, hb) in enumerate(G):
        for rb in range(4):
            regs = [acc(ja, rb)] + ([acc(jb, rb)] if jb is not None else [])
            gelu(k, regs, [rb] * len(regs), stats_rb=rb, first=(gi == 0))
    S = [VS + 2 * rb for rb in range(4)]; Qs = [VS + 8 + 2 * rb for rb in range(4)]
    for r in S + Qs: k(f'v_add_f32 v{r}, v{r}, v{r+1}')
    k(f'''s_lshl_b32 s34, s{S_RG}, 8
    s_lshl_b32 s35, s{S_WAVE}, 6
    s_add_u32 s34, s34, s35
    s_lshl_b32 s34, s34, 3
    s_add_u32 s37, s34, {WS_ST}
    s_and_b32 s35, s{S_CG}, 15
    s_lshl_b32 s35, s35, 14
    s_add_u32 s38, s37, s35''')
    for X in (S, Qs):
        k(f'v_permlane32_swap_b32 v{X[0]}, v{X[2]}\nv_permlane32_swap_b32 v{X[1]}, v{X[3]}')
    for X in (S, Qs):
        k(f'v_add_f32 v{X[0]}, v{X[0]}, v{X[2]}\nv_add_f32 v{X[1]}, v{X[1]}, v{X[3]}')
    k(f'v_lshlrev_b32 v{VA+3}, 3, v255\ns_nop 0')
    for X in (S, Qs): k(f'v_permlane16_swap_b32 v{X[0]}, v{X[1]}')
    k(f'v_add_f32 v{VS}, v{S[0]}, v{S[1]}\nv_add_f32 v{VS+1}, v{Qs[0]}, v{Qs[1]}')
    k(f'buffer_store_dwordx2 v[{VS}:{VS+1}], v{VA+3}, s[{S_WS}:{S_WS+3}], s38 offen sc1')
    stamp(k, K.opt, 3, S_WS, 250)
    SP = K.opt.get('spec', 0)
    if SP: NY = spec(k, qpart if typ == 'O' else kvpart, K, K.opt.get('sps', 9) if typ == 'O' else 7)
    elif typ == 'O': qpart(K, k)
    else: kvpart(K, k)
    stamp(k, K.opt, 4, S_WS, 250)
    t = VT
    k(f'''
    v_bfe_u32 v{t}, v255, 2, 1
    v_lshlrev_b32 v{t}, 9, v{t}
    v_bfe_u32 v{t+1}, v255, 3, 1
    v_lshl_add_u32 v{t}, v{t+1}, 7, v{t}
    v_and_b32 v{t+1}, 3, v255
    v_lshl_add_u32 v{t}, v{t+1}, 5, v{t}
    v_bfe_u32 v{t+1}, v255, 5, 1
    v_lshl_add_u32 v{t}, v{t+1}, 4, v{t}          ; + h*16
    v_bfe_u32 v{t+1}, v255, 4, 1
    v_lshl_add_u32 v{VA+1}, v{t+1}, 8, v{t}
    v_lshl_add_u32 v{VA+2}, v{t+1}, 3, v{t}
    ''')
    if typ == 'O': k(f'v_add_u32 v{VA+1}, 1024, v{VA+1}')
    R = 0
    k('s_mov_b32 s39, 0x40000')
    if SP:
        k(f's_waitcnt vmcnt({NY})')
        for c in range(32): k(f'v_accvgpr_read_b32 v{R+c}, a{c}')
        k(f's_branch {name}_{typ}_chk')
    k(f's_nop 0\n{name}_{typ}_poll:')
    k('s_mov_b32 s35, s37')
    for c in range(16):
        k(f'buffer_load_dwordx2 v[{R+2*c}:{R+2*c+1}], v{VA+3}, s[{S_WS}:{S_WS+3}], s35 offen sc1')
        if c < 15: k('s_add_u32 s35, s35, 16384')
    k(f's_waitcnt vmcnt(0)\n{name}_{typ}_chk:')
    k(f'v_max3_u32 v{t}, v{R}, v{R+1}, v{R+2}')
    for c in range(3, 31, 2): k(f'v_max3_u32 v{t}, v{t}, v{R+c}, v{R+c+1}')
    k(f'''v_max_u32 v{t}, v{t}, v{R+31}
    v_cmp_eq_u32 vcc, -1, v{t}
    s_sub_u32 s39, s39, 1
    s_cbranch_scc1 {name}_{typ}_go
    s_cbranch_vccnz {name}_{typ}_poll
    {name}_{typ}_go:''')
    stamp(k, K.opt, 5, S_WS, 250)
    for st in (8, 4, 2, 1):
        for c in range(st): k(f'v_pk_add_f32 v[{R+2*c}:{R+2*c+1}], v[{R+2*c}:{R+2*c+1}], v[{R+2*(c+st)}:{R+2*(c+st)+1}]')
    ln_finish(k, R, R + 1, 1792, t)
    k(f'''v_mul_f32 v{R}, v{R}, v{R+1}
    v_mov_b32 v{VS}, v{R+1}
    v_mov_b32 v{VS+4}, v{R+1}
    v_sub_f32 v{VS+1}, 0, v{R}
    v_sub_f32 v{VS+5}, 0, v{R}
    s_nop 1
    v_permlane32_swap_b32 v{VS}, v{VS+4}
    v_permlane32_swap_b32 v{VS+1}, v{VS+5}
    v_mov_b32 v{VS+2}, v{VS}
    v_mov_b32 v{VS+3}, v{VS+1}
    v_mov_b32 v{VS+6}, v{VS+4}
    v_mov_b32 v{VS+7}, v{VS+5}
    s_nop 0
    v_permlane16_swap_b32 v{VS}, v{VS+2}
    v_permlane16_swap_b32 v{VS+1}, v{VS+3}
    v_permlane16_swap_b32 v{VS+4}, v{VS+6}
    v_permlane16_swap_b32 v{VS+5}, v{VS+7}
    ''')
    for (ja, jb, off, hb) in G:
        for rb in range(4):
            regs = [acc(ja, rb)] + ([acc(jb, rb)] if jb is not None else [])
            c = VS + 2 * rb
            for p in pairs(regs):
                k(f'v_pk_fma_f32 v[{p}:{p+1}], v[{p}:{p+1}], v[{c}:{c+1}], v[{c}:{c+1}] op_sel:[0,0,1] op_sel_hi:[1,0,1]')
        for rb in range(4):
            pack(k, acc(ja, rb), acc(jb, rb) if jb is not None else None)
        for rb in range(4):
            a = acc(ja, rb)
            if jb is not None:
                if rb == 0: k('s_nop 0')
                k(f'v_permlane16_swap_b32 v{a}, v{a+2}\nv_permlane16_swap_b32 v{a+1}, v{a+3}')
                k(f'buffer_store_dwordx4 v[{a}:{a+3}], v{VA+1}, s[{S_WS}:{S_WS+3}], s{SB+rb} offen offset:{off}')
            else:
                k(f'buffer_store_dwordx2 v[{a}:{a+1}], v{VA+2}, s[{S_WS}:{S_WS+3}], s{SB+rb} offen offset:{off + 256*hb}')
    k(f'{name}_{typ}_done:')
```

```python
from core128 import *
import k2
from k2 import G3, side, S_WS, S_SP, S_B, S_WAVE, S_AO, S_BO, S_TB, S_FB, S_IT, V_AD, V_BD, V_AR, V_BR, V_Z, V_BIAS, V_L16, V_T, V_LANE
S_X, S_NB, S_WO, S_W2, S_OUT = 16, 27, 48, 52, 56
S_WOFF, S_B0, S_FW, S_FU, S_FO, S_M0, S_XB, S_U0 = 60, 61, 63, 64, 65, 66, 68, 70
V_WA, V_WR, V_OA, V_FL, V_PO, V_PU, V_ONE, V_ZERO = 192, 208, 202, 203, 204, 205, 206, 207
RW = 16
V_X = 96
LOG2E = 1.4426950408889634
N2, N4 = 16, 28
NB = N2 + N4
def slot_base(s): return 8192 * s
L_Z = 131072
S_ZM, S_ZO, V_ZR = 72, 73, 216
def accB(st, ja, jb): return (0 if st < N2 else 32) + (ja * 2 + jb) * 4
def bfr(st, kk, jb): return (st & 7) * 16 + kk * 8 + jb * 4

def w_dma(st):
    sr = S_WO if st < N2 else S_W2
    ops = [('i', f's_add_u32 m0, s{S_M0}, {slot_base(st % RW)}')]
    if st == N2: ops.append(('i', f's_mov_b32 s{S_WOFF}, 0'))
    else: ops.append(('i', 's_nop 0'))
    ops += [('vm', f'buffer_load_dwordx4 v{V_WA+i}, s[{sr}:{sr+3}], s{S_WOFF} offen offset:{i*1024} lds', ('W', st)) for i in range(2)]
    ops.append(('i', f's_add_u32 s{S_WOFF}, s{S_WOFF}, {64*2048}'))
    return ops
def b_load(st):
    ops = []
    if st == N2: ops += [('i', f's_mov_b32 s{S_B0}, s{S_U0}\ns_mov_b32 s{S_B0+1}, s{S_U0+1}')]
    for jb in range(2):
        for kk in range(2):
            r = bfr(st, kk, jb)
            ops.append(('vm', f'buffer_load_dwordx4 a[{r}:{r+3}], v{V_L16}, s[{S_WS}:{S_WS+3}], s{S_B0+jb} offen offset:{kk*1024}', ('B', st)))
        ops.append(('i', f's_add_u32 s{S_B0+jb}, s{S_B0+jb}, 2048'))
    return ops
def w_read(st, kk):
    b = slot_base(st % RW); ops = []
    for ja in range(4):
        r = FA(kk, ja)
        for t in range(2):
            ops.append(('lds', f'ds_read_b64_tr_b16 v[{r+2*t}:{r+2*t+1}], v{V_WR + (b >> 16)*4 + ja} offset:{(b & 65535) + (2*kk + t)*2048}', ('A', st, kk, ja)))
    return ops
def poll(name, lab, va, sb):
    ld = f'buffer_load_dword v{V_FL}, v{va}, s[{S_WS}:{S_WS+3}], s{sb} offen sc1'
    chk = f'''v_cmp_eq_u32 vcc, 0, v{V_FL}
    s_mov_b32 s36, 0x40000
    s_nop 0
    s_cbranch_vccz {name}_{lab}_got
    {name}_{lab}_spin:
    {ld}
    s_waitcnt vmcnt(0)
    v_cmp_eq_u32 vcc, 0, v{V_FL}
    s_sub_u32 s36, s36, 1
    s_cbranch_scc1 {name}_{lab}_got
    s_cbranch_vccz {name}_{lab}_got
    s_sleep 2
    s_branch {name}_{lab}_spin
    {name}_{lab}_got:'''
    return ('vm', ld, 'F' + lab), [('wv', 'F' + lab), ('i', chk)]

class Jobs:
    def __init__(self, PS, wfirst):
        self.w = 0; self.b = 0; self.PS = PS; self.pend = []; self.wfirst = wfirst
    def next(self, wmax, bmax):
        if not self.pend:
            cw = self.w < NB and self.w <= wmax; cb = self.b < NB and self.b <= bmax
            if cw and (not cb or self.w <= self.b + self.wfirst):
                D = w_dma(self.w); self.w += 1
                self.pend = [([D[0]] + ([D[1]] if 'nop' not in D[1][1] else []), D[2], []), ([], D[3], [D[4]])]
            elif cb:
                L = b_load(self.b); self.b += 1
                p = [L.pop(0)] if L[0][0] == 'i' else []
                self.pend = [(p, L[0], []), ([], L[1], [L[2]]), ([], L[3], []), ([], L[4], [L[5]])]
            else: return None
        return self.pend.pop(0)

def stageB(st, J, extra, st2, POS):
    gaps = [[] for _ in range(16)]
    for n, r in enumerate(w_read(st, 1)): gaps[n].append(r)
    if st + 1 < NB:
        gaps[8] += [('wlv', [('A', st, 1, 3)], ('W', st + 1)), ('i', 's_barrier')]
        if st2 is not None:
            gaps[8].append(('i', f's_mov_b32 s87, m0\ns_mov_b32 m0, s86\ns_add_u32 s86, s86, 1\nv_writelane_b32 v{st2}, s84, m0\ns_memtime s[84:85]\ns_mov_b32 m0, s87'))
        R = w_read(st + 1, 0)
        for p, r in zip((8, 9, 10, 11, 12, 13, 14, 15), R): gaps[p].append(r)
    for p in POS:
        bmax = st + 7 if st >= J.PS else min(st + 7, N2 - 1)
        j = J.next(st + RW - (0 if p > 9 else 1), bmax)
        if j is None: continue
        gaps[p - 1] += j[0]; gaps[p] += [j[1]] + j[2]
    assert J.w > min(st + 2, NB - 1) and J.b > min(st + 1, NB - 1), (st, J.w, J.b)
    ops = []; seen = set()
    for m in range(16):
        kk = m >> 3; ja = (m >> 1) & 3; jb = m & 1
        if ja & 1: jb = 1 - jb
        if extra and ('pre', m) in extra: ops += extra[('pre', m)]
        if m == 0: ops.append(('wlv', [('A', st, 0, 0)], ('B', st)))
        elif (kk, ja) not in seen: ops.append(('wl', [('A', st, kk, ja)]))
        seen.add((kk, ja))
        d = accB(st, ja, jb); a = FA(kk, ja); b = bfr(st, kk, jb)
        c = '0' if (st in (0, N2) and kk == 0) else f'v[{d}:{d+3}]'
        ops.append(('i', f'v_mfma_f32_16x16x32_bf16 v[{d}:{d+3}], v[{a}:{a+3}], a[{b}:{b+3}], {c}'))
        ops += gaps[m]
        if extra and m in extra: ops += extra[m]
    return ops

def make_k23(name, opt):
    k = Kernel(name, 256, 256, 163840, vgpr=256 + 128, sgpr=96, accum=256)
    g = G3(); t = V_T; PS = opt.get('PS', 12); NPRE = opt.get('NPRE', 28); NEPI = opt.get('NEPI', 6)
    if opt.get('st2'): g.st2 = 190
    k(f'''
    s_cmp_ge_u32 s2, 256
    s_cbranch_scc1 {name}_end
    s_load_dwordx2 s[{S_WS}:{S_WS+1}], s[0:1], 80
    s_load_dwordx2 s[{S_SP}:{S_SP+1}], s[0:1], 40
    s_load_dwordx2 s[{S_B}:{S_B+1}], s[0:1], 48
    s_load_dwordx2 s[{S_X}:{S_X+1}], s[0:1], 0
    s_load_dwordx2 s[{S_WO}:{S_WO+1}], s[0:1], 16
    s_load_dwordx2 s[{S_W2}:{S_W2+1}], s[0:1], 56
    s_load_dwordx2 s[{S_OUT}:{S_OUT+1}], s[0:1], 64
    v_lshrrev_b32 v1, 6, v0
    v_and_b32 v{V_LANE}, 63, v0
    ''')
    if opt.get('t0', 1): start_touch(k, name + '_pc0', None, va=226)
    srd(k, S_WS, 0, 0x10000000)
    k(f'v_readfirstlane_b32 s{S_WAVE}, v1')
    srd(k, S_SP, 0, 8 << 20); srd(k, S_B, 0, 4096); srd(k, S_X, 0, 4 << 20); srd(k, S_OUT, 0, 4 << 20)
    srd(k, S_WO, 0, 1024 * 2048); srd(k, S_W2, 0, 1792 * 2048)
    k(f'''
    v_lshlrev_b32 v{V_L16}, 4, v{V_LANE}
    v_add_u32 v{V_L16+1}, 4096, v{V_L16}
    s_lshr_b32 s30, s2, 3                   ; idx
    s_and_b32 s31, s2, 7                    ; xcd
    s_and_b32 s32, s31, 3
    s_lshl_b32 s32, s32, 2
    s_and_b32 s33, s30, 3
    s_add_u32 s{S_TB}, s32, s33
    s_lshr_b32 s32, s31, 2
    s_lshr_b32 s33, s30, 2
    s_lshl_b32 s34, s32, 3
    s_xor_b32 s35, s33, {opt.get('nbx', 4)}
    s_add_u32 s{S_NB}, s34, s35
    s_mul_i32 s32, s32, 7
    s_add_u32 s{S_FB}, s32, s33
    ''')
    setB = f'''
    v_lshrrev_b32 v{t}, 3, v{V_LANE}
    v_bfe_u32 v{t+1}, v{V_LANE}, 4, 2
    v_bfe_u32 v{t+2}, v{V_LANE}, 1, 2
    v_xor_b32 v{t+1}, v{t+1}, v{t+2}
    v_and_b32 v{t+2}, 1, v{V_LANE}
    v_lshlrev_b32 v{t+2}, 4, v{t+2}
    v_lshl_add_u32 v{t+1}, v{t+1}, 5, v{t+2}
    v_lshl_add_u32 v{t+1}, v{t}, 11, v{t+1}
    s_lshl_b32 s32, s{S_WAVE}, 15
    s_lshl_b32 s33, s{S_NB}, 7
    s_add_u32 s32, s32, s33
    v_add_u32 v{V_WA}, s32, v{t+1}
    v_add_u32 v{V_WA+1}, {16384 - 1024}, v{V_WA}
    s_mov_b32 s{S_WOFF}, 0
    s_lshl_b32 s{S_M0}, s{S_WAVE}, 11
    '''
    if opt.get('wlin'): setB += f'''
    s_lshl_b32 s33, s{S_NB}, 13
    s_add_u32 s32, s33, s{S_M0}
    v_add_u32 v{V_WA}, s32, v{V_L16}
    v_mov_b32 v{V_WA+1}, v{V_WA}
    '''
    setB += f'''
    v_lshrrev_b32 v{t}, 2, v{V_LANE}
    v_bfe_u32 v{t+1}, v{V_LANE}, 3, 2
    v_and_b32 v{t+2}, 3, v{V_LANE}
    v_lshlrev_b32 v{t+2}, 3, v{t+2}
    v_lshl_add_u32 v{t+2}, v{t}, 7, v{t+2}
    '''
    for j in range(4):
        setB += f'''v_xor_b32 v{t+4}, {j}, v{t+1}
        v_lshl_add_u32 v{V_WR+j}, v{t+4}, 5, v{t+2}
        v_add_u32 v{V_WR+4+j}, 0x10000, v{V_WR+j}
        '''
    setB += f'''
    s_lshl_b32 s32, s{S_TB}, 3
    s_lshl_b32 s33, s{S_WAVE}, 1
    s_add_u32 s32, s32, s33
    s_lshl_b32 s33, s32, 15
    s_add_u32 s{S_B0}, s33, {WS_O}
    s_add_u32 s{S_B0+1}, s{S_B0}, 32768
    s_mul_i32 s34, s32, 57344
    s_add_u32 s{S_U0}, s34, {WS_U}
    s_add_u32 s{S_U0+1}, s{S_U0}, 57344
    s_lshl_b32 s34, s{S_NB}, 7
    s_add_u32 s{S_XB}, s33, s34
    s_add_u32 s{S_XB+1}, s{S_XB}, 32768
    v_and_b32 v{t}, 15, v{V_LANE}
    v_bfe_u32 v{t+1}, v{V_LANE}, 4, 1
    v_lshlrev_b32 v{t+1}, 5, v{t+1}
    v_lshl_add_u32 v{t}, v{t}, 11, v{t+1}
    v_lshrrev_b32 v{t+1}, 5, v{V_LANE}
    v_lshl_add_u32 v{V_OA}, v{t+1}, 4, v{t}
    s_lshl_b32 s{S_ZM}, s{S_WAVE}, 13
    s_add_u32 s{S_ZM}, s{S_ZM}, {L_Z}
    v_add_u32 v{V_ZR}, s{S_ZM}, v{V_L16}
    ; flags
    v_min_u32 v{V_PO}, 31, v{V_LANE}
    v_lshlrev_b32 v{V_PO}, 2, v{V_PO}
    v_min_u32 v{V_PU}, 27, v{V_LANE}
    v_lshlrev_b32 v{V_PU}, 2, v{V_PU}
    v_mov_b32 v{V_ONE}, 1
    v_mov_b32 v{V_ZERO}, 0
    s_lshr_b32 s32, s{S_TB}, 2
    s_lshl_b32 s32, s32, 7
    s_add_u32 s{S_FO}, s32, {WS_FLAG + 4096}
    s_lshl_b32 s32, s{S_TB}, 8
    s_add_u32 s32, s32, {WS_FLAG}
    s_lshr_b32 s33, s{S_WAVE}, 1
    s_lshl_b32 s34, s33, 7
    s_add_u32 s{S_FU}, s32, s34
    s_lshl_b32 s33, s33, 2
    s_add_u32 s32, s32, s33
    s_and_b32 s33, s{S_WAVE}, 1
    s_lshl_b32 s33, s33, 7
    s_add_u32 s32, s32, s33
    s_lshl_b32 s33, s{S_FB}, 3
    s_add_u32 s{S_FW}, s32, s33
    '''
    flag_store = lambda s: f's_mov_b64 exec, 1\nbuffer_store_dword v{V_ONE}, v{V_ZERO}, s[{S_WS}:{S_WS+3}], s{s} offen sc1\ns_mov_b64 exec, -1'
    J = Jobs(PS, opt.get('WF', 1))
    pre = [J.next(7, 7) for _ in range(NPRE + NEPI)]
    while J.pend: pre.append(J.next(7, 7))
    preB = sum([a + ([('i', 's_nop 0')] if a else []) + [v] + c for a, v, c in pre], [])
    k(f'''s_cmp_lt_u32 s30, 28
    s_cbranch_scc1 {name}_main
    s_lshl_b32 s31, s31, 2
    s_add_u32 s37, s31, s30
    s_sub_u32 s37, s37, 28
    s_waitcnt lgkmcnt(0)
    ''')
    stamp(k, opt, 0, S_WS, t)
    if opt.get('stamp'): k('s_waitcnt vmcnt(0)')
    side(k, name, opt, head=37, sc=opt.get('osc', ' sc1'))
    k(setB)
    k(f'''s_lshl_b32 s32, s{S_WAVE}, 7
    s_lshl_b32 s33, s37, 2
    s_add_u32 s32, s32, s33
    s_add_u32 s32, s32, {WS_FLAG + 4096}
    s_mov_b32 s{S_FW}, {WS_FLAG + 8192}
    s_waitcnt vmcnt(0)''')
    k(flag_store(32))
    if opt.get('ct2', 1):
        k('\n'.join(code_touch(f'{name}_end - 32768', S_WAVE, V_LANE, 220, f'{name}_pc', neg=True)) + '\nglobal_load_dword v222, v[220:221], off')
    if opt.get('pfo', 8) + opt.get('pfw', 14):
        k(f'''s_sub_u32 s32, s30, 28
        s_lshl_b32 s32, s32, 2
        s_add_u32 s32, s32, s{S_WAVE}
        s_lshl_b32 s32, s32, 14
        s_bfe_u32 s33, s2, 0x10002
        s_lshl_b32 s33, s33, 10
        s_add_u32 s32, s32, s33
        v_lshrrev_b32 v223, 3, v{V_LANE}
        v_and_b32 v224, 7, v{V_LANE}
        v_lshlrev_b32 v224, 7, v224
        v_lshl_add_u32 v223, v223, 11, v224''')
        for sr, N in ((S_WO, opt.get('pfo', 8)), (S_W2, opt.get('pfw', 14))):
            for n in range(N): k(f's_add_u32 s33, s32, {n*262144}\nbuffer_load_dword v222, v223, s[{sr}:{sr+3}], s33 offen')
    stamp(k, opt, 1, S_WS, t + 4)
    ld, chk = poll(name, 'os', V_PO, S_FO)
    tx, _ = resolve([ld] + chk + preB, Q())
    k('\n'.join(tx))
    if g.st2 is not None: k('s_mov_b32 s86, 32\ns_mov_b32 s84, 0')
    stamp(k, opt, 2, S_WS, t + 4)
    k(f's_waitcnt vmcnt(0)\ns_branch {name}_J\n{name}_main:')
    k2.g3_setup(k, g)
    if opt.get('splin'):
        k(f'''s_lshl_b32 s32, s{S_TB}, 14
        s_lshl_b32 s33, s{S_WAVE}, 12
        s_add_u32 s32, s32, s33
        v_add_u32 v{V_BD}, s32, v{V_L16}
        v_mov_b32 v{V_BD+1}, v{V_BD}
        v_mov_b32 v{V_BD+2}, v{V_BD}
        v_mov_b32 v{V_BD+3}, v{V_BD}''')
        g.inc_b = lambda: [('i', f's_add_u32 s{S_BO}, s{S_BO}, 262144')]
    stamp(k, opt, 0, S_WS, t)
    if opt.get('stamp'): k('s_waitcnt vmcnt(0)')
    mid = [('i', setB), ('i', k2.g3_mid()), ('i', f's_mov_b32 s{S_ZO}, s44')]
    zl = k2.g3_zloads()
    ld, chk = poll(name, 'o', V_PO, S_FO)
    ex = {27: {3: [ld]}, 28: {16: chk}, 29: {}, 30: {}, 31: {}}
    for n in range(4): ex[27].setdefault(5 + 2 * n, []).append(zl[n])
    pos = [(28, m) for m in (19, 23, 27, 31)] + [(st, m) for st in (29, 30, 31) for m in (2, 6, 10, 14, 19, 23, 27, 31)]
    for n in range(8):
        ex[31].setdefault(16 + 2 * n, []).append(('lds', f'ds_read_b128 v[{V_Z+4*n}:{V_Z+4*n+3}], v{V_ZR} offset:{n*1024}', 'Zl'))
    zlab = name + '_zskip'
    g.loop_extra = {2: {16: [('i', f'''s_cmp_gt_u32 s{S_IT}, 4
    s_cbranch_scc1 {zlab}
    s_mov_b32 m0, s{S_ZM}
    s_add_u32 s{S_ZM}, s{S_ZM}, 2048
    buffer_load_dwordx4 v{V_L16}, s[{S_WS}:{S_WS+3}], s{S_ZO} offen lds
    buffer_load_dwordx4 v{V_L16}, s[{S_WS}:{S_WS+3}], s{S_ZO} offen offset:1024 lds
    s_add_u32 s{S_ZO}, s{S_ZO}, 57344
    {zlab}:''')]}}
    for (st, m), (a, v, c) in zip(pos, pre[:NPRE]):
        ex[st].setdefault(m - 1, []).extend(a); ex[st].setdefault(m, []).extend([v] + c)
    q = Q()
    g.run(k, 32, q, mid, ex, S_IT, (lambda: stamp(k, opt, 1, S_WS, t + 4)) if opt.get('stamp') else None)
    if opt.get('stamp'): stamp(k, opt, 2, S_WS, t + 4); q.v.append('st')
    epi = []; rest = pre[NPRE:]
    for o in [('wl', 'Zl')] + k2.g3_epi(' sc1'):
        if o[0] == 'vm' and rest:
            a, v, c = rest.pop(0); epi += a + ([('i', 's_nop 0')] if a else []) + [v] + c
        epi.append(o)
    assert not rest
    tx, _ = resolve(epi, q)
    k('\n'.join(tx))
    k(f'{name}_J:')
    if opt.get('stamp'): stamp(k, opt, 3, S_WS, t + 4); q.v.append('st')
    if g.st2 is not None: g.st2_out(k, opt, S_WS, V_L16); q.v.append('st'); k('s_mov_b32 s86, 0')
    ops = [('wv', ('W', 0)), ('i', 's_barrier')] + w_read(0, 0)
    for _ in range(opt.get('NJ', 12)):
        j = J.next(RW - 1, 7)
        if j is None: break
        a, v, c = j; ops += a + ([('i', 's_nop 0')] if a else []) + [v] + c
    ld, chk = poll(name, 'u', V_PU, S_FU)
    exB = {opt.get('FS', 1): {15: [('wv', 'U'), ('vm', flag_store(S_FW), 'FS')]}}
    exB.setdefault(PS - opt.get('FD', 2), {})[2] = [ld]
    exB.setdefault(PS, {})[('pre', 0)] = chk
    xl = [('vm', f'buffer_load_dwordx4 v[{V_X+4*n}:{V_X+4*n+3}], v{V_OA}, s[{S_X}:{S_X+3}], s{S_XB + (n >> 1)} offen offset:{(n & 1)*64}', 'X') for n in range(4)]
    exB[NB - 4] = {2 * n + 1: [xl[n]] for n in range(4)}
    for st in range(NB): ops += stageB(st, J, exB.get(st), g.st2, opt.get('POS', (1, 4, 7, 10, 13, 15)))
    ops.append(('wv', 'X'))
    tx, _ = resolve(ops, q)
    k('\n'.join(tx))
    stamp(k, opt, 4, S_WS, t + 4)
    if g.st2 is not None:
        g.st2_out(k, dict(opt, stamp_slot=3), S_WS, V_L16)
    k(f'v_mov_b32 v{t}, {f2u(-LOG2E):#x}\ns_nop 6')
    for jb in range(2):
        for P in range(2):
            n = jb * 2 + P; a, b = accB(N2, 2 * P, jb), accB(N2, 2 * P + 1, jb)
            T = 112 + (n & 1) * 16; W = T + 8
            H = [a, a + 2, b, b + 2]
            for i, p in enumerate(H): k(f'v_pk_mul_f32 v[{T+2*i}:{T+2*i+1}], v[{p}:{p+1}], v[{t}:{t+1}] op_sel_hi:[1,0]')
            for i in range(8): k(f'v_exp_f32 v{T+i}, v{T+i}')
            for i, p in enumerate(H):
                k(f'v_pk_mul_f32 v[{p}:{p+1}], v[{p}:{p+1}], v[{p-32}:{p-31}]')
                k(f'v_pk_add_f32 v[{T+2*i}:{T+2*i+1}], v[{T+2*i}:{T+2*i+1}], 1.0 op_sel_hi:[1,0]')
            for i in range(8): k(f'v_rcp_f32 v{T+i}, v{T+i}')
            for i, p in enumerate(H):
                k(f'v_lshlrev_b32 v{W+2*i}, 16, v{V_X+4*n+i}')
                k(f'v_pk_mul_f32 v[{p}:{p+1}], v[{p}:{p+1}], v[{T+2*i}:{T+2*i+1}]')
            for i in range(4): k(f'v_and_b32 v{W+2*i+1}, 0xffff0000, v{V_X+4*n+i}')
            for r in range(4): k(f'v_permlane16_swap_b32 v{a+r}, v{b+r}')
            for i, p in enumerate(H): k(f'v_pk_add_f32 v[{p}:{p+1}], v[{p}:{p+1}], v[{W+2*i}:{W+2*i+1}]')
            for i, p in enumerate(H): k(f'v_cvt_pk_bf16_f32 v{V_X+4*n+i}, v{p}, v{p+1}')
            k(f'buffer_store_dwordx4 v[{V_X+4*n}:{V_X+4*n+3}], v{V_OA}, s[{S_OUT}:{S_OUT+3}], s{S_XB+jb} offen offset:{P*64}')
    stamp(k, opt, 5, S_WS, t + 4)
    k(f'{name}_end:\ns_endpgm')
    return k
```

```python
from common import *

def acc(j, rb): return (j * 4 + rb) * 4
V_XD = 208
V_CA = [242, 243, 244, 245, 220, 221]
V_XB, V_XR = 238, 240
V_RS = 236
A_CF, A_CS, A_ONE, A_CX = 84, 96, 112, 116
V_CX = 234
V_CL = 248
WS_CX = WS_ST + 0x90000
S_DBG, S_XW, S_XR, S_XBEG, S_XEND, S_RSO, S_CNT = 44, 48, 49, 50, 51, 52, 53
WS_RS = WS_ST + 0x80000
V_WD = 216
V_PR = 222
V_WR = 226
V_PR2, V_WR2 = 234, 238
V_T = 246
A_W = 0
A_X = 52
L_WS = 13312
S_X, S_WQ, S_WW, S_WS = 4, 8, 12, 16
S_XO, S_QO, S_WO = 20, 21, 22
S_WB = 24
S_WAVE, S_RG, S_CG, S_P, S_IT = 29, 30, 31, 32, 33
S_DB = 40
NSUB = 32

class K1:
    def __init__(self, name, opt):
        self.name = name; self.opt = opt
        self.RD = RD = opt.get('RD', 4)
        self.L_DUM = RD * L_WS
        self.L_KV = self.L_X = self.L_DUM + 1024
        self.KVS = 24576
        self.L_CS = self.L_X + 4 * 24576
        self.L_RS = self.L_CS + 2048
        lds = self.L_RS + 2048
        assert RD == 4
        self.k = Kernel(name, 256, 256, lds, vgpr=256 + 120, sgpr=96, accum=256)
    def xf(self, u, rb): return A_X + (u & 1) * 16 + rb * 4
    def wf(self, j): return A_W + j * 4
    def mfma(self, typ, j, rb, u):
        d = acc(j, rb); x = self.xf(u, rb); w = self.wf(j)
        a, b = (x, w) if (typ == 'E' and j < 8) else (w, x)
        return ('i', f'v_mfma_f32_16x16x32_bf16 v[{d}:{d+3}], a[{a}:{a+3}], a[{b}:{b+3}], v[{d}:{d+3}]')
    def wread(self, typ, u, j):
        slot = u % self.RD
        hi = slot >= 4
        base = (slot & 3) * L_WS
        npan = 8 if typ == 'E' else 4
        U = 13 - npan
        ops = []
        for t in range(2):
            r = self.wf(j) + 2 * t
            if j < npan:
                off = base + (j >> 2) * 4096 + 512 * t; v = (V_PR2 if hi else V_PR) + (j & 3)
            else:
                c = 4 * U * t + (j - npan)
                off = base + npan * 1024 + 256 * (c >> 3); v = (V_WR2 if hi else V_WR) + (c & 7)
            ops.append(('lds', f'ds_read_b64_tr_b16 a[{r}:{r+1}], v{v} offset:{off}', ('W', u, j)))
        return ops
    def wdma(self, typ, u, slot):
        ring = (u % self.RD) * L_WS
        if typ == 'E':
            lo, sr, so = [(0, S_WQ, S_QO), (4096, S_WQ, S_QO), (8192, S_WW, S_WO), (None, S_WW, S_WO)][slot]
        else:
            lo, sr, so = [(0, S_WQ, S_QO), (4096, S_WW, S_WO), (8192, S_WW, S_WO), (None, S_WW, S_WO)][slot]
        m = f's_add_u32 m0, s{S_WB}, {ring + lo}' if lo is not None else f's_mov_b32 m0, s{S_DB + (u % self.RD)}'
        return [('i', m), ('vm', f'buffer_load_dwordx4 v{V_WD+slot}, s[{sr}:{sr+3}], s{so} offen lds', ('Wd', u))]
    def xdma(self, st, n, sb=S_XW, add=0):
        return [('i', f's_add_u32 m0, s{sb}, {add + n*1024}'), ('vm', f'buffer_load_dwordx4 v{V_XD+n}, s[{S_X}:{S_X+3}], s{S_XO} offen lds', ('Xd', st))]
    def xread(self, u, rb):
        r = self.xf(u, rb)
        return ('lds', f'ds_read_b128 a[{r}:{r+3}], v{V_XR + (u & 1)} offset:{rb*2048}', ('X', u))
    def csread(self, u, e):
        r = A_CF + 2 * e
        return ('lds', f'ds_read_b64_tr_b16 a[{r}:{r+1}], v{V_CA[e] if u >= 28 else V_CX + e} offset:{(u % self.RD) * L_WS}', ('C', u, e >> 1))
    def csmfma(self, m, u=28):
        d = A_CS + 4 * m if u >= 28 else A_CX; w = A_CF + 4 * m if m < 3 else self.wf(12)
        return ('i', f'v_mfma_f32_16x16x32_bf16 a[{d}:{d+3}], a[{w}:{w+3}], a[{A_ONE}:{A_ONE+3}], a[{d}:{d+3}]')
    def incs(self):
        return [('i', f's_add_u32 s{S_QO}, s{S_QO}, {32*6144}'), ('i', f's_add_u32 s{S_WO}, s{S_WO}, {32*7168}')]
    def substep(self, typ, u):
        RD = self.RD
        gaps = [[] for _ in range(52)]; pre = [[] for _ in range(52)]
        for j in range(9):
            r = self.wread(typ, u, j + 4)
            gaps[4 * j].append(r[0]); gaps[4 * j + 1].append(r[1])
        if u + 1 < NSUB:
            nxt = sum([self.wread(typ, u + 1, j) for j in range(4)], [])
            for n, r in enumerate(nxt): gaps[40 + n].append(r)
            gaps[39] += [('wlv', [('W', u, 12)], [('Wd', u + 1), ('Xd', (u + 2) >> 1)]), ('i', 's_barrier')]
            for rb in range(4): gaps[8 * rb + 2].append(self.xread(u + 1, rb))
        for j in range(13): pre[4 * j].append(('wl', [('W', u, j)] + ([('X', u)] if j == 0 else [])))
        if self.opt.get('cs', 1):
            if u >= 28:
                for e in range(6): gaps[4 * e + 1].append(self.csread(u, e))
                for m in range(3): gaps[8 * m + 21] += [('wl', [('C', u, m)]), self.csmfma(m)]
                gaps[49].append(self.csmfma(3))
            else:
                for e in range(2): gaps[4 * e + 1].append(self.csread(u, e))
                gaps[36] += [('wl', [('C', u, 0)]), self.csmfma(0, u)]
        if u <= 27:
            for s in range(4):
                d = self.xdma((u + 5) >> 1, s + (0 if u & 1 else 4))
                gaps[8 * s + 6].append(d[0]); gaps[8 * s + 7].append(d[1])
        if not u & 1:
            gaps[38].append(('i', f's_add_u32 s{S_XO}, s{S_XO}, 128'))
            gaps[48] += [('i', f's_mov_b32 s{S_XW}, s{S_XR}'), ('i', f's_add_u32 s{S_XR}, s{S_XR}, 8192')]
            gaps[50] += [('i', f's_cmp_eq_u32 s{S_XR}, s{S_XEND}'), ('i', f's_cselect_b32 s{S_XR}, s{S_XBEG}, s{S_XR}')]
            gaps[51] += [('i', f'v_add_u32 v{V_XR}, s{S_XR}, v{V_XB}'), ('i', f'v_add_u32 v{V_XR+1}, s{S_XR}, v{V_XB+1}')]
        nm = f'{self.name}_{typ}'
        w0 = lambda kind, txt, tag: [('i', 's_mov_b64 exec, s[92:93]'), (kind, txt, tag), ('i', 's_mov_b64 exec, -1')]
        if u == 28:
            gaps[0].append(('i', f'v_cmp_gt_u32 vcc, 32, v{V_T+7}'))
            gaps[4].append(('i', f's_cbranch_vccnz {nm}_spin\n{nm}_spun:'))
            gaps[48].append(('vm', f'buffer_load_dwordx2 v[{V_RS}:{V_RS+1}], v{V_XD+7}, s[{S_WS}:{S_WS+3}], s{S_RSO} offen sc1', 'rs'))
            gaps[7].append(('i', f'v_and_b32 v{V_T+7}, 48, v255'))
            gaps[self.opt.get('cxs', 14)].append(('i', f's_mov_b64 exec, s[84:85]\nbuffer_store_dwordx4 a[{A_CX}:{A_CX+3}], v{V_T+7}, s[{S_WS}:{S_WS+3}], s86 offen sc1\ns_mov_b64 exec, -1'))
            gaps[15].append(('i', f'v_lshlrev_b32 v{V_XD+7}, 3, v255'))
            gaps[22].append(('i', f'v_lshlrev_b32 v{V_XD+4}, 7, v255'))
            gaps[23].append(('i', f'v_min_u32 v{V_XD+5}, {27*128}, v{V_XD+4}'))
            gaps[30].append(('i', f'v_min_u32 v{V_XD+6}, {15*128}, v{V_XD+4}'))
        if u == 28 and self.opt.get('ct', 1):
            for n, x in enumerate(code_touch(f'{nm}_epi', S_WAVE, 255, V_XD + 2, f'{nm}_pc', 1)): gaps[[34, 35, 36, 37, 38, 50, 51][n]].append(('i', x))
        if u == 29 and self.opt.get('ct', 1):
            gaps[0] += [('i', 's_not_b64 exec, s[92:93]'), ('vm', f'global_load_dword v{V_T+8}, v[{V_XD+2}:{V_XD+3}], off', 'pf'), ('i', 's_mov_b64 exec, -1')]
        if u == 29:
            for r in range(4): gaps[4 * r + 3].append(('i', f'v_mov_b32 v{V_CL+r}, 0'))
            gaps[50].append(('i', f'v_min_u32 v{V_T+6}, 51, v255'))
            gaps[51].append(('i', f'v_lshlrev_b32 v{V_T+6}, 4, v{V_T+6}'))
        if u == 30:
            gaps[self.opt.get('cxg', 34)] += w0('vm', f'buffer_load_dwordx4 v[{V_CL}:{V_CL+3}], v{V_T+6}, s[{S_WS}:{S_WS+3}], s87 offen sc1', 'cx')
        if u == 31:
            gaps[46] += [('wv', ['cx']), ('i', f'v_max3_u32 v{V_T+7}, v{V_CL}, v{V_CL+1}, v{V_CL+2}')]
            gaps[47] += [('i', f'v_max_u32 v{V_T+7}, v{V_T+7}, v{V_CL+3}'), ('i', f'v_cmp_eq_u32 vcc, -1, v{V_T+7}')]
            gaps[48].append(('i', f'v_add_u32 v{V_T+7}, {self.L_CS + 1024}, v{V_T+6}'))
            gaps[50] += [('i', f's_cbranch_vccnz {nm}_cx\n{nm}_cxd:'), *w0('lds', f'ds_write_b128 v{V_T+7}, v[{V_CL}:{V_CL+3}]', 'rsw')]
            gaps[6].append(('i', f's_lshl_b32 s34, s{S_WAVE}, 9'))
            gaps[7].append(('i', f's_add_u32 s34, s34, {self.L_RS}'))
            gaps[14].append(('i', f'v_lshl_add_u32 v{V_T}, v255, 2, s34'))
            gaps[15].append(('i', f's_lshl_b32 s34, s{S_WAVE}, 6'))
            gaps[22].append(('i', f's_add_u32 s34, s34, {self.L_CS}'))
            gaps[23].append(('i', f'v_and_b32 v{V_T+1}, 48, v255'))
            gaps[30].append(('i', f'v_add_u32 v{V_XD}, {self.L_CS + 768}, v{V_T+1}'))
            gaps[31].append(('i', f'v_add_u32 v{V_T+1}, s34, v{V_T+1}'))
            gaps[40] += [('wv', ['rs']), ('lds', f'ds_write_b32 v{V_T}, v{V_RS}', 'rsw')]
            gaps[41].append(('lds', f'ds_write_b32 v{V_T}, v{V_RS+1} offset:256', 'rsw'))
            gaps[43].append(('i', 's_mov_b32 exec_lo, 0x10001\ns_mov_b32 exec_hi, 0x10001'))
            for m in range(3): gaps[43].append(('lds', f'ds_write_b128 v{V_T+1}, a[{A_CS+4*m}:{A_CS+4*m+3}] offset:{256*m}', 'rsw'))
            gaps[43].append(('i', 's_mov_b64 exec, -1'))
        un = u + RD - 1
        if un < NSUB:
            for s in range(4):
                d = self.wdma(typ, un, s)
                gaps[8 * s + 2].append(d[0]); gaps[8 * s + 3].append(d[1])
            inc = self.incs()
            gaps[34].append(inc[0]); gaps[35].append(inc[1])
        if u in (29, 31) and self.opt.get('pf1', 1):
            for n in range(self.opt.get('pf1n', 3)):
                gaps[8 * n + 2] += [('i', 's_mov_b64 exec, s[92:93]' if u == 31 else 's_not_b64 exec, s[92:93]'),
                                    ('vm', f'buffer_load_dword v{V_T+8}, v{V_XD+4+n}, s[{68+4*n}:{71+4*n}], s{80+n} offen', 'pf'), ('i', 's_mov_b64 exec, -1')]
        ops = []
        for m in range(52):
            ops += pre[m]
            j, rb = m >> 2, m & 3
            if (j + (u & 1)) & 1: rb = 3 - rb
            ops.append(self.mfma(typ, j, rb, u))
            ops += gaps[m]
        return ops
    def setup(self, typ):
        k = self.k; U = 5 if typ == 'E' else 9; t = V_T
        k(f'''
        v_lshrrev_b32 v{t}, 3, v255
        s_lshl_b32 s34, s{S_WAVE}, 3
        v_add_u32 v{t+1}, s34, v{t}                 ; k
        v_bfe_u32 v{t+2}, v{t+1}, 1, 1
        v_bfe_u32 v{t+3}, v{t+1}, 3, 1
        v_lshl_or_b32 v{t+2}, v{t+3}, 1, v{t+2}     ; f
        v_bfe_u32 v{t+3}, v255, 1, 2
        v_xor_b32 v{t+2}, v{t+2}, v{t+3}            ; j
        v_and_b32 v{t+3}, 1, v255
        v_lshlrev_b32 v{t+3}, 4, v{t+3}
        v_lshl_or_b32 v{t+2}, v{t+2}, 5, v{t+3}
        v_mul_u32_u24 v{t+1}, 6144, v{t+1}
        v_add_u32 v{t+1}, v{t+1}, v{t+2}
        s_lshl_b32 s34, s{S_P}, 7
        ''')
        if typ == 'E':
            k(f'''s_add_u32 s35, s34, 2048
            v_add_u32 v{V_WD}, s35, v{t+1}
            s_add_u32 s35, s34, 4096
            v_add_u32 v{V_WD+1}, s35, v{t+1}''')
            wslots = [(2, 0, False), (3, 4, True)]; wcol = 0
        else:
            k(f'v_add_u32 v{V_WD}, s34, v{t+1}')
            wslots = [(1, 0, False), (2, 4, False), (3, 8, True)]; wcol = 160
        k(f's_mul_i32 s35, s{S_P}, 448')
        if wcol: k(f's_add_u32 s35, s35, {wcol}')
        magic = {5: 52429, 9: 58255}[U]; sh = {5: 18, 9: 19}[U]; mg8 = {5: 13108, 9: 7282}[U]
        for slot, n0, only0 in wslots:
            if only0: k(f's_mov_b32 s34, {32*n0}')
            else: k(f's_lshl_b32 s34, s{S_WAVE}, 5\n s_add_u32 s34, s34, {32*n0}')
            k(f'''
            v_lshrrev_b32 v{t}, 1, v255
            v_add_u32 v{t}, s34, v{t}                  ; pos
            v_mul_u32_u24 v{t+1}, {mg8}, v{t}
            v_bfe_u32 v{t+1}, v{t+1}, 19, 1
            v_lshlrev_b32 v{t+1}, 2, v{t+1}
            v_xor_b32 v{t}, v{t}, v{t+1}               ; u
            v_mul_u32_u24 v{t+1}, {magic}, v{t}
            v_lshrrev_b32 v{t+1}, {sh}, v{t+1}         ; k
            v_mul_u32_u24 v{t+2}, {U}, v{t+1}
            v_sub_u32 v{t+2}, v{t}, v{t+2}             ; j
            v_mul_u32_u24 v{t+1}, 7168, v{t+1}
            v_lshl_add_u32 v{t+1}, v{t+2}, 5, v{t+1}
            v_and_b32 v{t+2}, 1, v255
            v_lshl_add_u32 v{t+1}, v{t+2}, 4, v{t+1}
            v_add_u32 v{V_WD+slot}, s35, v{t+1}
            ''')
            if only0:
                k(f'''s_cmp_eq_u32 s{S_WAVE}, 0
                s_cselect_b32 s34, -1, 0
                v_and_b32 v{V_WD+slot}, s34, v{V_WD+slot}
                s_mov_b32 s36, {self.L_DUM}''')
                for r in range(self.RD):
                    k(f's_cselect_b32 s{S_DB+r}, {r*L_WS + 12288}, s36')
    def setup2(self, typ):
        U = 5 if typ == 'E' else 9; t = V_T
        o = f'''
        v_lshrrev_b32 v{t}, 4, v255
        v_bfe_u32 v{t+1}, v255, 2, 2
        v_lshl_add_u32 v{t+1}, v{t}, 3, v{t+1}      ; k0
        v_mul_u32_u24 v{t+2}, {U}, v{t+1}           ; a
        v_and_b32 v{t+3}, 1, v{t}
        v_lshlrev_b32 v{t+3}, 2, v{t+3}             ; x
        v_and_b32 v{t+4}, 3, v255
        v_lshlrev_b32 v{t+4}, 3, v{t+4}
        '''
        for e in range(8):
            o += f'''v_add_u32 v{t+5}, {e}, v{t+2}
            v_xor_b32 v{t+5}, v{t+5}, v{t+3}
            v_lshl_add_u32 v{V_WR+e}, v{t+5}, 5, v{t+4}
            '''
        npan = 13 - U
        for e in range(6):
            m, tt = e >> 1, e & 1
            if 4 * m >= npan:
                o += f'''s_add_u32 s34, s{S_WAVE}, {4*U*tt + 4*m - npan}
                s_and_b32 s35, s34, 7
                s_lshr_b32 s34, s34, 3
                s_lshl_b32 s34, s34, 8
                s_add_u32 s34, s34, {npan*1024}
                v_add_u32 v{t+5}, s35, v{t+2}
                v_xor_b32 v{t+5}, v{t+5}, v{t+3}
                v_lshl_add_u32 v{t+5}, v{t+5}, 5, v{t+4}
                v_add_u32 v{V_CA[e]}, s34, v{t+5}
                '''
        for tt in range(2):
            o += f'''s_add_u32 s34, s83, {4*U*tt - npan + 64}
            s_and_b32 s35, s34, 7
            s_lshr_b32 s34, s34, 3
            s_lshl_b32 s34, s34, 8
            s_add_u32 s34, s34, {npan*1024 - 2048}
            v_add_u32 v{t+5}, s35, v{t+2}
            v_xor_b32 v{t+5}, v{t+5}, v{t+3}
            v_lshl_add_u32 v{t+5}, v{t+5}, 5, v{t+4}
            v_add_u32 v{V_CX+tt}, s34, v{t+5}
            '''
        o += f'''
        v_bfe_u32 v{t+5}, v255, 3, 1
        v_lshrrev_b32 v{t+3}, 1, v{t+3}
        v_or_b32 v{t+5}, v{t+5}, v{t+3}             ; f
        v_lshl_add_u32 v{t+4}, v{t+1}, 7, v{t+4}
        '''
        for j in range(4):
            o += f'''v_xor_b32 v{t+6}, {j}, v{t+5}
            v_lshl_add_u32 v{V_PR+j}, v{t+6}, 5, v{t+4}
            '''
        o += f'''v_xor_b32 v{t+6}, s{S_WAVE}, v{t+5}
        v_lshl_add_u32 v{t+6}, v{t+6}, 5, v{t+4}
        '''
        for e in range(6):
            if 4 * (e >> 1) < npan: o += f'v_add_u32 v{V_CA[e]}, {(e >> 1) * 4096 + 512 * (e & 1)}, v{t+6}\n'
        o += f'''s_lshr_b32 s34, s83, 2
        s_lshl_b32 s34, s34, 12
        s_add_u32 s35, s34, 512
        s_cmp_ge_u32 s83, {npan}|s_cbranch_scc1 {self.name}_{typ}_win|v_add_u32 v{V_CX}, s34, v{t+6}|v_add_u32 v{V_CX+1}, s35, v{t+6}|{self.name}_{typ}_win:
        '''
        o += f'''
        v_and_b32 v{t+5}, 15, v255
        v_lshrrev_b32 v{t+6}, 1, v{t+5}
        v_xor_b32 v{t+6}, v{t+6}, v{t}
        v_lshlrev_b32 v{t+6}, 4, v{t+6}
        v_lshl_add_u32 v{V_XB}, v{t+5}, 7, v{t+6}
        v_xor_b32 v{V_XB+1}, 64, v{V_XB}
        v_add_u32 v{V_XR}, s{S_XBEG}, v{V_XB}
        v_add_u32 v{V_XR+1}, s{S_XBEG}, v{V_XB+1}
        v_mov_b32 v{t+5}, 0x3f803f80
        '''
        for r in range(4): o += f'v_accvgpr_write_b32 a{A_ONE+r}, v{t+5}\n'
        for r in list(range(16)) + [20, 21, 22, 23]: o += f'v_accvgpr_write_b32 a{A_CS+r}, 0\n'
        o += f'v_and_b32 v{t+6}, 7, v255\nv_lshlrev_b32 v{t+6}, 5, v{t+6}\nv_mov_b32 v{t+7}, 32\n'
        o += f'''
        s_lshl_b32 s34, s2, 2
        s_add_u32 s34, s34, s{S_WAVE}
        s_lshl_b32 s80, s34, 13
        s_mul_i32 s81, s34, {28*128}
        s_lshl_b32 s82, s34, 11
        '''
        if self.RD > 4:
            for j in range(12): o += f'v_add_u32 v{V_PR2+j}, {4*L_WS}, v{V_PR+j}\n'
        return o
    def mainloop(self, typ):
        k = self.k; RD = self.RD; q = Q(); ops = []
        for n in range(4): ops.append(('vm', f'buffer_load_dwordx4 v[{4*n}:{4*n+3}], v20, s[{S_X}:{S_X+3}], s55 offen offset:{16*n}', 'sx'))
        G = []
        for u in range(RD - 1):
            g = []
            for s in range(4):
                g += [self.wdma(typ, u, s)] + [self.xdma(u, n, S_XBEG, u * 8192) for n in ([2 * s, 2 * s + 1] if u < 2 else [s])]
            g[-1] = g[-1] + self.incs() + ([('i', f's_add_u32 s{S_XO}, s{S_XO}, 128')] if u < 2 else [])
            G.append(g)
        def weave(dm, text):
            L = [x.strip().replace('|', '\n') for x in text.split('\n') if x.strip() and not x.strip().startswith(';')]
            o = []; n = len(dm)
            for i, d in enumerate(dm):
                part = L[i * len(L) // n:(i + 1) * len(L) // n]
                o += [d[0], ('i', 's_nop 0')] + d[1:] + [('i', x) for x in part]
            return o
        zero = lambda a, b: ''.join(f'v_mov_b32 v{r}, 0\n' for r in range(a, b))
        sa, sb = self.rowstats(typ)
        ops += weave(G[0] + G[1], self.setup2(typ) + zero(24, 208))
        ops.append(('wv', ['sx']))
        ops += weave(G[2], sa)
        if self.opt.get('pf0', 0):
            ops.append(('i', f'''s_lshl_b32 s34, s2, 2
            s_add_u32 s34, s34, s{S_WAVE}
            s_mul_i32 s35, s34, 7168
            s_mul_i32 s34, s34, 6144
            v_lshlrev_b32 v22, 7, v255
            v_min_u32 v23, {47*128}, v22
            v_min_u32 v22, {55*128}, v22'''))
            ops.append(('vm', f'buffer_load_dword v{V_T+8}, v23, s[{S_WQ}:{S_WQ+3}], s34 offen', 'pf'))
            ops.append(('vm', f'buffer_load_dword v{V_T+8}, v22, s[{S_WW}:{S_WW+3}], s35 offen', 'pf'))
        ops.append(('i', sb + zero(0, 24)))
        ops += [('wv', [('Wd', 0), ('Xd', 0)]), ('i', 's_barrier')]
        for rb in range(4): ops.append(self.xread(0, rb))
        for j in range(4): ops += self.wread(typ, 0, j)
        t, _ = resolve(ops, q)
        k('\n'.join(t))
        if self.opt.get('stamp'):
            stamp(k, self.opt, 1, S_WS, V_T); q.v.append('st'); q.l = []
        nit = NSUB // RD
        k(f's_mov_b32 s{S_IT}, {nit - 1}')
        lab = k.label('loop')
        body = lambda it: sum([self.substep(typ, RD * it + x) for x in range(RD)], [])
        t = loop_resolve(body, range(nit - 1), q)
        k(f'.p2align 4\n{lab}:')
        k('\n'.join(t))
        k(f's_cmp_eq_u32 s{S_IT}, s56\ns_cbranch_scc1 {self.name}_{typ}_sig\n{self.name}_{typ}_sigd:')
        k(f's_sub_u32 s{S_IT}, s{S_IT}, 1\ns_cmp_lg_u32 s{S_IT}, 0\ns_cbranch_scc1 {lab}')
        t, _ = resolve(body(nit - 1), q)
        k('\n'.join(t))
        k(f'''{self.name}_{typ}_epi:
        s_nop 4
        s_mov_b32 exec_lo, 0x10001
        s_mov_b32 exec_hi, 0x10001
        ds_write_b128 v{V_XD}, a[{A_CS+12}:{A_CS+15}]
        s_mov_b64 exec, -1
        s_waitcnt lgkmcnt(0)
        s_barrier''')
        stamp(k, self.opt, 2, S_WS, V_T)
    def outline(self, typ):
        nm = f'{self.name}_{typ}'
        self.k(f'''{nm}_sig:
        s_cmp_eq_u32 s56, 2
        s_cbranch_scc0 {nm}_sig1
        buffer_load_dword v{V_T+7}, v{V_T+6}, s[{S_DBG}:{S_DBG+3}], 0 offen sc1
        s_branch {nm}_sigd
        {nm}_sig1:
        s_mov_b32 s56, 2
        v_mov_b32 v{V_T}, 1
        s_mov_b64 exec, 1
        buffer_atomic_add v{V_T}, off, s[{S_DBG}:{S_DBG+3}], s{S_CNT} sc1
        s_mov_b64 exec, -1
        s_branch {nm}_sigd
        {nm}_spin:
        s_mov_b32 s35, 0x40000
        {nm}_spin1:
        buffer_load_dword v{V_T+7}, v{V_T+6}, s[{S_DBG}:{S_DBG+3}], 0 offen sc1
        s_waitcnt vmcnt(0)
        v_cmp_gt_u32 vcc, 32, v{V_T+7}
        s_sub_u32 s35, s35, 1
        s_cbranch_scc1 {nm}_spun
        s_cbranch_vccnz {nm}_spin1
        s_branch {nm}_spun
        {nm}_cx:
        s_mov_b32 s35, 0x40000
        {nm}_cx1:
        buffer_load_dwordx4 v[{V_CL}:{V_CL+3}], v{V_T+6}, s[{S_WS}:{S_WS+3}], s87 offen sc1
        s_waitcnt vmcnt(0)
        v_max3_u32 v{V_XD+1}, v{V_CL}, v{V_CL+1}, v{V_CL+2}
        v_max_u32 v{V_XD+1}, v{V_XD+1}, v{V_CL+3}
        v_cmp_eq_u32 vcc, -1, v{V_XD+1}
        s_sub_u32 s35, s35, 1
        s_cbranch_scc1 {nm}_cxd
        s_cbranch_vccnz {nm}_cx1
        s_branch {nm}_cxd''')
    def rowstats(self, typ):
        class B:
            t = ''
            def __call__(s, x): s.t += x + '\n'
        k = B(); nm = f'{self.name}_{typ}'
        k('v_mov_b32 v21, 0x3f803f80')
        for n in range(16):
            a, b = 16 + (n & 1), 18 + (n & 1)
            k(f'v_dot2_f32_bf16 v{a}, v{n}, v21, {"v%d" % a if n > 1 else 0}\nv_dot2_f32_bf16 v{b}, v{n}, v{n}, {"v%d" % b if n > 1 else 0}')
        k(f'''v_mov_b32 v0, -1
        v_mov_b32 v1, -1
        v_and_b32 v8, 48, v255
        v_mov_b32 v2, -1
        v_mov_b32 v3, -1
        v_mov_b32 v4, 0
        v_add_f32 v16, v16, v17
        v_add_f32 v17, v18, v19
        v_lshlrev_b32 v5, 3, v255
        v_lshlrev_b32 v6, 2, v255''')
        for r in (8, 4, 2, 1):
            k(f'v_add_f32_dpp v16, v16, v16 row_ror:{r} row_mask:0xf bank_mask:0xf\nv_add_f32_dpp v17, v17, v17 row_ror:{r} row_mask:0xf bank_mask:0xf\ns_nop 0')
        k(f'''v_mov_b32 v18, v16
        v_mov_b32 v19, v17
        v_lshrrev_b32 v7, 5, v255
        v_lshlrev_b32 v7, 3, v7
        v_permlane16_swap_b32 v18, v16
        v_permlane16_swap_b32 v19, v17
        v_add_f32 v16, v16, v18
        v_add_f32 v17, v17, v19''')
        ln_finish(k, 16, 17, 1024, 18)
        k(f'''v_sub_f32 v18, 0, v16
        v_mov_b32 v16, v17
        v_mov_b32 v17, v18''')
        ta = k.t; k.t = ''
        k(f'''s_mov_b32 exec_lo, 1
        s_mov_b32 exec_hi, 1
        buffer_store_dwordx2 v[16:17], v7, s[{S_WS}:{S_WS+3}], s57 offen sc1
        s_mov_b64 exec, s[84:85]
        buffer_store_dwordx4 v[0:3], v8, s[{S_WS}:{S_WS+3}], s86 offen sc1
        s_mov_b64 exec, -1
        s_cmp_lt_u32 s{S_P}, 8
        s_cbranch_scc1 {nm}_nost
        buffer_store_dwordx2 v[2:3], v5, s[{S_WS}:{S_WS+3}], s58 offen sc1
        {nm}_nost:
        s_cmp_lg_u32 s{S_WAVE}, 0
        s_cbranch_scc1 {nm}_nofl
        buffer_store_dword v4, v6, s[{S_WS}:{S_WS+3}], s59 offen
        {nm}_nofl:
        s_nop 1''')
        return ta, k.t
    def prologue(self):
        k = self.k; name = self.name
        k(f'''
        s_cmp_ge_u32 s2, 256
        s_cbranch_scc1 {name}_end
        s_load_dwordx2 s[{S_X}:{S_X+1}], s[0:1], 0
        s_load_dwordx2 s[{S_DBG}:{S_DBG+1}], s[0:1], 72
        s_load_dwordx2 s[{S_WQ}:{S_WQ+1}], s[0:1], 8
        s_load_dwordx2 s[{S_WW}:{S_WW+1}], s[0:1], 32
        s_load_dwordx2 s[{S_WS}:{S_WS+1}], s[0:1], 80
        s_load_dwordx2 s[68:69], s[0:1], 40
        s_load_dwordx2 s[72:73], s[0:1], 56
        s_load_dwordx2 s[76:77], s[0:1], 16
        v_lshrrev_b32 v1, 6, v0
        v_and_b32 v255, 63, v0
        ''')
        if self.opt.get('t0', 1): start_touch(k, name + '_pc0', None, name + '_O', 5, va=248, vd=254)
        srd(k, 68, 0, 8 << 20); srd(k, 72, 0, 1792 * 2048); srd(k, 76, 0, 2 << 20)
        srd(k, S_X, 0, 4 << 20); srd(k, S_DBG, 0, 256)
        k(f'v_readfirstlane_b32 s{S_WAVE}, v1')
        cgmap = f'''s_bfe_u32 s34, s2, 0x20001
        s_lshl_b32 s34, s34, 2
        s_bfe_u32 s35, s2, 0x20005
        s_add_u32 s34, s34, s35
        s_bitcmp1_b32 s2, 7
        s_cselect_b32 s35, {16 if self.opt.get('map', 1) == 2 else 0}, {0 if self.opt.get('map', 1) == 2 else 16}
        s_add_u32 s{S_CG}, s34, s35''' if self.opt.get('map', 1) else f'''s_bfe_u32 s34, s2, 0x20001
        s_lshl_b32 s34, s34, 3
        s_lshr_b32 s35, s2, 5
        s_add_u32 s{S_CG}, s34, s35'''
        srd(k, S_WQ, 0, 1024 * 6144); srd(k, S_WW, 0, 1024 * 7168); srd(k, S_WS, 0, 0x10000000)
        k(f'''
        s_and_b32 s34, s2, 1
        s_lshl_b32 s34, s34, 2
        s_bfe_u32 s35, s2, 0x20003
        s_add_u32 s{S_RG}, s34, s35
        {cgmap}
        s_lshr_b32 s{S_P}, s{S_CG}, 1
        s_lshl_b32 s{S_WB}, s{S_WAVE}, 10
        s_mov_b32 s{S_XO}, 0
        s_mov_b32 s{S_QO}, 0
        s_mov_b32 s{S_WO}, 0
        s_lshl_b32 s34, s{S_RG}, 19
        s_lshl_b32 s35, s{S_WAVE}, 17
        s_add_u32 s34, s34, s35
        v_lshrrev_b32 v1, 4, v255
        v_and_b32 v2, 7, v255
        v_xor_b32 v1, v1, v2
        v_lshl_add_u32 v1, v1, 4, s34
        v_lshrrev_b32 v2, 3, v255
        v_lshl_add_u32 v{V_XD}, v2, 11, v1
        v_xor_b32 v1, 64, v{V_XD}
        v_add_u32 v{V_XD+1}, 16384, v1
        v_lshlrev_b32 v20, 6, v255
        s_mul_i32 s{S_XBEG}, s{S_WAVE}, 24576
        s_add_u32 s{S_XBEG}, s{S_XBEG}, {self.L_X}
        s_add_u32 s{S_XEND}, s{S_XBEG}, 24576
        s_add_u32 s{S_XW}, s{S_XBEG}, 16384
        s_mov_b32 s{S_XR}, s{S_XBEG}
        s_lshl_b32 s{S_CNT}, s{S_RG}, 5
        s_lshl_b32 s34, s{S_RG}, 8
        s_lshl_b32 s35, s{S_WAVE}, 6
        s_add_u32 s35, s34, s35
        s_lshl_b32 s35, s35, 3
        s_add_u32 s{S_RSO}, s35, {WS_RS}
        s_and_b32 s36, s{S_CG}, 15
        s_lshl_b32 s36, s36, 14
        s_add_u32 s58, s35, s36
        s_add_u32 s58, s58, {WS_ST}
        s_lshl_b32 s35, s{S_CG}, 3
        s_add_u32 s34, s34, s35
        s_lshl_b32 s35, s{S_WAVE}, 1
        s_add_u32 s34, s34, s35
        s_lshl_b32 s55, s34, 11
        s_lshl_b32 s57, s34, 3
        s_add_u32 s57, s57, {WS_RS}
        s_lshl_b32 s59, s2, 8
        s_add_u32 s59, s59, {WS_FLAG}
        s_lshl_b32 s83, s{S_RG}, 2
        s_add_u32 s83, s83, s{S_WAVE}
        s_cmp_le_u32 s83, 12
        s_cselect_b32 s84, 0x10001, 0
        s_mov_b32 s85, s84
        s_min_u32 s83, s83, 12
        s_lshl_b32 s87, s{S_CG}, 10
        s_add_u32 s87, s87, {WS_CX}
        s_lshl_b32 s86, s83, 6
        s_add_u32 s86, s86, s87
        s_cmp_eq_u32 s{S_WAVE}, 0
        s_cselect_b32 s92, -1, 0
        s_cselect_b32 s93, -1, 0
        s_cselect_b32 s56, {NSUB // 4 - 1}, -1
        ''')
        for i in range(2, 8): k(f'v_add_u32 v{V_XD+i}, {(i >> 1)*32768}, v{V_XD + (i & 1)}')
    def build(self):
        from k1epi import epilogue
        k = self.k; name = self.name
        self.prologue()
        k(f's_bitcmp1_b32 s{S_CG}, 0\ns_cbranch_scc1 {name}_O')
        for typ in 'EO':
            if typ == 'O': k(f'{name}_O:')
            self.setup(typ)
            k('s_waitcnt lgkmcnt(0)')
            stamp(k, self.opt, 0, S_WS, V_T)
            if self.opt.get('stamp'): k('s_waitcnt vmcnt(0)')
            self.mainloop(typ)
            epilogue(self, typ)
            stamp(k, self.opt, 6, S_WS, V_T)
            k('s_endpgm')
            self.outline(typ)
        k(f'{name}_end:\ns_endpgm')
        return k
```

```python
from common import *

def acc(j, rb): return (j * 4 + rb) * 4
V_XD = 208
V_CA = [242, 243, 244, 245, 220, 221]
V_XB, V_XR = 238, 240
V_RS = 236
A_CF, A_CS, A_ONE, A_CX = 84, 96, 112, 116
V_CX = 234
V_CL = 248
WS_CX = WS_ST + 0x90000
S_DBG, S_XW, S_XR, S_XBEG, S_XEND, S_RSO, S_CNT = 44, 48, 49, 50, 51, 52, 53
WS_RS = WS_ST + 0x80000
V_WD = 216
V_PR = 222
V_WR = 226
V_PR2, V_WR2 = 234, 238
V_T = 246
A_W = 0
A_X = 52
L_WS = 13312
S_X, S_WQ, S_WW, S_WS = 4, 8, 12, 16
S_XO, S_QO, S_WO = 20, 21, 22
S_WB = 24
S_WAVE, S_RG, S_CG, S_P, S_IT = 29, 30, 31, 32, 33
S_DB = 40
NSUB = 32

class K1:
    def __init__(self, name, opt):
        self.name = name; self.opt = opt
        self.RD = RD = opt.get('RD', 4)
        self.L_DUM = RD * L_WS
        self.L_KV = self.L_X = self.L_DUM + 1024
        self.KVS = 24576
        self.L_CS = self.L_X + 4 * 24576
        self.L_RS = self.L_CS + 2048
        lds = self.L_RS + 2048
        assert RD == 4
        self.k = Kernel(name, 256, 256, lds, vgpr=256 + 120, sgpr=96, accum=256)
    def xf(self, u, rb): return A_X + (u & 1) * 16 + rb * 4
    def wf(self, j): return A_W + j * 4
    def mfma(self, typ, j, rb, u):
        d = acc(j, rb); x = self.xf(u, rb); w = self.wf(j)
        a, b = (x, w) if (typ == 'E' and j < 8) else (w, x)
        return ('i', f'v_mfma_f32_16x16x32_bf16 v[{d}:{d+3}], a[{a}:{a+3}], a[{b}:{b+3}], v[{d}:{d+3}]')
    def wread(self, typ, u, j):
        slot = u % self.RD
        hi = slot >= 4
        base = (slot & 3) * L_WS
        npan = 8 if typ == 'E' else 4
        U = 13 - npan
        ops = []
        for t in range(2):
            r = self.wf(j) + 2 * t
            if j < npan:
                off = base + (j >> 2) * 4096 + 512 * t; v = (V_PR2 if hi else V_PR) + (j & 3)
            else:
                c = 4 * U * t + (j - npan)
                off = base + npan * 1024 + 256 * (c >> 3); v = (V_WR2 if hi else V_WR) + (c & 7)
            ops.append(('lds', f'ds_read_b64_tr_b16 a[{r}:{r+1}], v{v} offset:{off}', ('W', u, j)))
        return ops
    def wdma(self, typ, u, slot):
        ring = (u % self.RD) * L_WS
        if typ == 'E':
            lo, sr, so = [(0, S_WQ, S_QO), (4096, S_WQ, S_QO), (8192, S_WW, S_WO), (None, S_WW, S_WO)][slot]
        else:
            lo, sr, so = [(0, S_WQ, S_QO), (4096, S_WW, S_WO), (8192, S_WW, S_WO), (None, S_WW, S_WO)][slot]
        m = f's_add_u32 m0, s{S_WB}, {ring + lo}' if lo is not None else f's_mov_b32 m0, s{S_DB + (u % self.RD)}'
        return [('i', m), ('vm', f'buffer_load_dwordx4 v{V_WD+slot}, s[{sr}:{sr+3}], s{so} offen lds', ('Wd', u))]
    def xdma(self, st, n, sb=S_XW, add=0):
        return [('i', f's_add_u32 m0, s{sb}, {add + n*1024}'), ('vm', f'buffer_load_dwordx4 v{V_XD+n}, s[{S_X}:{S_X+3}], s{S_XO} offen lds', ('Xd', st))]
    def xread(self, u, rb):
        r = self.xf(u, rb)
        return ('lds', f'ds_read_b128 a[{r}:{r+3}], v{V_XR + (u & 1)} offset:{rb*2048}', ('X', u))
    def csread(self, u, e):
        r = A_CF + 2 * e
        return ('lds', f'ds_read_b64_tr_b16 a[{r}:{r+1}], v{V_CA[e] if u >= 28 else V_CX + e} offset:{(u % self.RD) * L_WS}', ('C', u, e >> 1))
    def csmfma(self, m, u=28):
        d = A_CS + 4 * m if u >= 28 else A_CX; w = A_CF + 4 * m if m < 3 else self.wf(12)
        return ('i', f'v_mfma_f32_16x16x32_bf16 a[{d}:{d+3}], a[{w}:{w+3}], a[{A_ONE}:{A_ONE+3}], a[{d}:{d+3}]')
    def incs(self):
        return [('i', f's_add_u32 s{S_QO}, s{S_QO}, {32*6144}'), ('i', f's_add_u32 s{S_WO}, s{S_WO}, {32*7168}')]
    def substep(self, typ, u):
        RD = self.RD
        gaps = [[] for _ in range(52)]; pre = [[] for _ in range(52)]
        for j in range(9):
            r = self.wread(typ, u, j + 4)
            gaps[4 * j].append(r[0]); gaps[4 * j + 1].append(r[1])
        if u + 1 < NSUB:
            nxt = sum([self.wread(typ, u + 1, j) for j in range(4)], [])
            for n, r in enumerate(nxt): gaps[40 + n].append(r)
            gaps[39] += [('wlv', [('W', u, 12)], [('Wd', u + 1), ('Xd', (u + 2) >> 1)]), ('i', 's_barrier')]
            for rb in range(4): gaps[8 * rb + 2].append(self.xread(u + 1, rb))
        for j in range(13): pre[4 * j].append(('wl', [('W', u, j)] + ([('X', u)] if j == 0 else [])))
        if self.opt.get('cs', 1):
            if u >= 28:
                for e in range(6): gaps[4 * e + 1].append(self.csread(u, e))
                for m in range(3): gaps[8 * m + 21] += [('wl', [('C', u, m)]), self.csmfma(m)]
                gaps[49].append(self.csmfma(3))
            else:
                for e in range(2): gaps[4 * e + 1].append(self.csread(u, e))
                gaps[36] += [('wl', [('C', u, 0)]), self.csmfma(0, u)]
        if u <= 27:
            for s in range(4):
                d = self.xdma((u + 5) >> 1, s + (0 if u & 1 else 4))
                gaps[8 * s + 6].append(d[0]); gaps[8 * s + 7].append(d[1])
        if not u & 1:
            gaps[38].append(('i', f's_add_u32 s{S_XO}, s{S_XO}, 128'))
            gaps[48] += [('i', f's_mov_b32 s{S_XW}, s{S_XR}'), ('i', f's_add_u32 s{S_XR}, s{S_XR}, 8192')]
            gaps[50] += [('i', f's_cmp_eq_u32 s{S_XR}, s{S_XEND}'), ('i', f's_cselect_b32 s{S_XR}, s{S_XBEG}, s{S_XR}')]
            gaps[51] += [('i', f'v_add_u32 v{V_XR}, s{S_XR}, v{V_XB}'), ('i', f'v_add_u32 v{V_XR+1}, s{S_XR}, v{V_XB+1}')]
        nm = f'{self.name}_{typ}'
        w0 = lambda kind, txt, tag: [('i', 's_mov_b64 exec, s[92:93]'), (kind, txt, tag), ('i', 's_mov_b64 exec, -1')]
        if u == 28:
            gaps[0].append(('i', f'v_cmp_gt_u32 vcc, 32, v{V_T+7}'))
            gaps[4].append(('i', f's_cbranch_vccnz {nm}_spin\n{nm}_spun:'))
            gaps[48].append(('vm', f'buffer_load_dwordx2 v[{V_RS}:{V_RS+1}], v{V_XD+7}, s[{S_WS}:{S_WS+3}], s{S_RSO} offen sc1', 'rs'))
            gaps[7].append(('i', f'v_and_b32 v{V_T+7}, 48, v255'))
            gaps[self.opt.get('cxs', 14)].append(('i', f's_mov_b64 exec, s[84:85]\nbuffer_store_dwordx4 a[{A_CX}:{A_CX+3}], v{V_T+7}, s[{S_WS}:{S_WS+3}], s86 offen sc1\ns_mov_b64 exec, -1'))
            gaps[15].append(('i', f'v_lshlrev_b32 v{V_XD+7}, 3, v255'))
            gaps[22].append(('i', f'v_lshlrev_b32 v{V_XD+4}, 7, v255'))
            gaps[23].append(('i', f'v_min_u32 v{V_XD+5}, {27*128}, v{V_XD+4}'))
            gaps[30].append(('i', f'v_min_u32 v{V_XD+6}, {15*128}, v{V_XD+4}'))
        if u == 28 and self.opt.get('ct', 1):
            for n, x in enumerate(code_touch(f'{nm}_epi', S_WAVE, 255, V_XD + 2, f'{nm}_pc', 1)): gaps[[34, 35, 36, 37, 38, 50, 51][n]].append(('i', x))
        if u == 29 and self.opt.get('ct', 1):
            gaps[0] += [('i', 's_not_b64 exec, s[92:93]'), ('vm', f'global_load_dword v{V_T+8}, v[{V_XD+2}:{V_XD+3}], off', 'pf'), ('i', 's_mov_b64 exec, -1')]
        if u == 29:
            for r in range(4): gaps[4 * r + 3].append(('i', f'v_mov_b32 v{V_CL+r}, 0'))
            gaps[50].append(('i', f'v_min_u32 v{V_T+6}, 51, v255'))
            gaps[51].append(('i', f'v_lshlrev_b32 v{V_T+6}, 4, v{V_T+6}'))
        if u == 30:
            gaps[self.opt.get('cxg', 34)] += w0('vm', f'buffer_load_dwordx4 v[{V_CL}:{V_CL+3}], v{V_T+6}, s[{S_WS}:{S_WS+3}], s87 offen sc1', 'cx')
        if u == 31:
            gaps[46] += [('wv', ['cx']), ('i', f'v_max3_u32 v{V_T+7}, v{V_CL}, v{V_CL+1}, v{V_CL+2}')]
            gaps[47] += [('i', f'v_max_u32 v{V_T+7}, v{V_T+7}, v{V_CL+3}'), ('i', f'v_cmp_eq_u32 vcc, -1, v{V_T+7}')]
            gaps[48].append(('i', f'v_add_u32 v{V_T+7}, {self.L_CS + 1024}, v{V_T+6}'))
            gaps[50] += [('i', f's_cbranch_vccnz {nm}_cx\n{nm}_cxd:'), *w0('lds', f'ds_write_b128 v{V_T+7}, v[{V_CL}:{V_CL+3}]', 'rsw')]
            gaps[6].append(('i', f's_lshl_b32 s34, s{S_WAVE}, 9'))
            gaps[7].append(('i', f's_add_u32 s34, s34, {self.L_RS}'))
            gaps[14].append(('i', f'v_lshl_add_u32 v{V_T}, v255, 2, s34'))
            gaps[15].append(('i', f's_lshl_b32 s34, s{S_WAVE}, 6'))
            gaps[22].append(('i', f's_add_u32 s34, s34, {self.L_CS}'))
            gaps[23].append(('i', f'v_and_b32 v{V_T+1}, 48, v255'))
            gaps[30].append(('i', f'v_add_u32 v{V_XD}, {self.L_CS + 768}, v{V_T+1}'))
            gaps[31].append(('i', f'v_add_u32 v{V_T+1}, s34, v{V_T+1}'))
            gaps[40] += [('wv', ['rs']), ('lds', f'ds_write_b32 v{V_T}, v{V_RS}', 'rsw')]
            gaps[41].append(('lds', f'ds_write_b32 v{V_T}, v{V_RS+1} offset:256', 'rsw'))
            gaps[43].append(('i', 's_mov_b32 exec_lo, 0x10001\ns_mov_b32 exec_hi, 0x10001'))
            for m in range(3): gaps[43].append(('lds', f'ds_write_b128 v{V_T+1}, a[{A_CS+4*m}:{A_CS+4*m+3}] offset:{256*m}', 'rsw'))
            gaps[43].append(('i', 's_mov_b64 exec, -1'))
        un = u + RD - 1
        if un < NSUB:
            for s in range(4):
                d = self.wdma(typ, un, s)
                gaps[8 * s + 2].append(d[0]); gaps[8 * s + 3].append(d[1])
            inc = self.incs()
            gaps[34].append(inc[0]); gaps[35].append(inc[1])
        if u in (29, 31) and self.opt.get('pf1', 1):
            for n in range(self.opt.get('pf1n', 3)):
                gaps[8 * n + 2] += [('i', 's_mov_b64 exec, s[92:93]' if u == 31 else 's_not_b64 exec, s[92:93]'),
                                    ('vm', f'buffer_load_dword v{V_T+8}, v{V_XD+4+n}, s[{68+4*n}:{71+4*n}], s{80+n} offen', 'pf'), ('i', 's_mov_b64 exec, -1')]
        ops = []
        for m in range(52):
            ops += pre[m]
            j, rb = m >> 2, m & 3
            if (j + (u & 1)) & 1: rb = 3 - rb
            ops.append(self.mfma(typ, j, rb, u))
            ops += gaps[m]
        return ops
    def setup(self, typ):
        k = self.k; U = 5 if typ == 'E' else 9; t = V_T
        k(f'''
        v_lshrrev_b32 v{t}, 3, v255
        s_lshl_b32 s34, s{S_WAVE}, 3
        v_add_u32 v{t+1}, s34, v{t}                 ; k
        v_bfe_u32 v{t+2}, v{t+1}, 1, 1
        v_bfe_u32 v{t+3}, v{t+1}, 3, 1
        v_lshl_or_b32 v{t+2}, v{t+3}, 1, v{t+2}     ; f
        v_bfe_u32 v{t+3}, v255, 1, 2
        v_xor_b32 v{t+2}, v{t+2}, v{t+3}            ; j
        v_and_b32 v{t+3}, 1, v255
        v_lshlrev_b32 v{t+3}, 4, v{t+3}
        v_lshl_or_b32 v{t+2}, v{t+2}, 5, v{t+3}
        v_mul_u32_u24 v{t+1}, 6144, v{t+1}
        v_add_u32 v{t+1}, v{t+1}, v{t+2}
        s_lshl_b32 s34, s{S_P}, 7
        ''')
        if typ == 'E':
            k(f'''s_add_u32 s35, s34, 2048
            v_add_u32 v{V_WD}, s35, v{t+1}
            s_add_u32 s35, s34, 4096
            v_add_u32 v{V_WD+1}, s35, v{t+1}''')
            wslots = [(2, 0, False), (3, 4, True)]; wcol = 0
        else:
            k(f'v_add_u32 v{V_WD}, s34, v{t+1}')
            wslots = [(1, 0, False), (2, 4, False), (3, 8, True)]; wcol = 160
        k(f's_mul_i32 s35, s{S_P}, 448')
        if wcol: k(f's_add_u32 s35, s35, {wcol}')
        magic = {5: 52429, 9: 58255}[U]; sh = {5: 18, 9: 19}[U]; mg8 = {5: 13108, 9: 7282}[U]
        for slot, n0, only0 in wslots:
            if only0: k(f's_mov_b32 s34, {32*n0}')
            else: k(f's_lshl_b32 s34, s{S_WAVE}, 5\n s_add_u32 s34, s34, {32*n0}')
            k(f'''
            v_lshrrev_b32 v{t}, 1, v255
            v_add_u32 v{t}, s34, v{t}                  ; pos
            v_mul_u32_u24 v{t+1}, {mg8}, v{t}
            v_bfe_u32 v{t+1}, v{t+1}, 19, 1
            v_lshlrev_b32 v{t+1}, 2, v{t+1}
            v_xor_b32 v{t}, v{t}, v{t+1}               ; u
            v_mul_u32_u24 v{t+1}, {magic}, v{t}
            v_lshrrev_b32 v{t+1}, {sh}, v{t+1}         ; k
            v_mul_u32_u24 v{t+2}, {U}, v{t+1}
            v_sub_u32 v{t+2}, v{t}, v{t+2}             ; j
            v_mul_u32_u24 v{t+1}, 7168, v{t+1}
            v_lshl_add_u32 v{t+1}, v{t+2}, 5, v{t+1}
            v_and_b32 v{t+2}, 1, v255
            v_lshl_add_u32 v{t+1}, v{t+2}, 4, v{t+1}
            v_add_u32 v{V_WD+slot}, s35, v{t+1}
            ''')
            if only0:
                k(f'''s_cmp_eq_u32 s{S_WAVE}, 0
                s_cselect_b32 s34, -1, 0
                v_and_b32 v{V_WD+slot}, s34, v{V_WD+slot}
                s_mov_b32 s36, {self.L_DUM}''')
                for r in range(self.RD):
                    k(f's_cselect_b32 s{S_DB+r}, {r*L_WS + 12288}, s36')
    def setup2(self, typ):
        U = 5 if typ == 'E' else 9; t = V_T
        o = f'''
        v_lshrrev_b32 v{t}, 4, v255
        v_bfe_u32 v{t+1}, v255, 2, 2
        v_lshl_add_u32 v{t+1}, v{t}, 3, v{t+1}      ; k0
        v_mul_u32_u24 v{t+2}, {U}, v{t+1}           ; a
        v_and_b32 v{t+3}, 1, v{t}
        v_lshlrev_b32 v{t+3}, 2, v{t+3}             ; x
        v_and_b32 v{t+4}, 3, v255
        v_lshlrev_b32 v{t+4}, 3, v{t+4}
        '''
        for e in range(8):
            o += f'''v_add_u32 v{t+5}, {e}, v{t+2}
            v_xor_b32 v{t+5}, v{t+5}, v{t+3}
            v_lshl_add_u32 v{V_WR+e}, v{t+5}, 5, v{t+4}
            '''
        npan = 13 - U
        for e in range(6):
            m, tt = e >> 1, e & 1
            if 4 * m >= npan:
                o += f'''s_add_u32 s34, s{S_WAVE}, {4*U*tt + 4*m - npan}
                s_and_b32 s35, s34, 7
                s_lshr_b32 s34, s34, 3
                s_lshl_b32 s34, s34, 8
                s_add_u32 s34, s34, {npan*1024}
                v_add_u32 v{t+5}, s35, v{t+2}
                v_xor_b32 v{t+5}, v{t+5}, v{t+3}
                v_lshl_add_u32 v{t+5}, v{t+5}, 5, v{t+4}
                v_add_u32 v{V_CA[e]}, s34, v{t+5}
                '''
        for tt in range(2):
            o += f'''s_add_u32 s34, s83, {4*U*tt - npan + 64}
            s_and_b32 s35, s34, 7
            s_lshr_b32 s34, s34, 3
            s_lshl_b32 s34, s34, 8
            s_add_u32 s34, s34, {npan*1024 - 2048}
            v_add_u32 v{t+5}, s35, v{t+2}
            v_xor_b32 v{t+5}, v{t+5}, v{t+3}
            v_lshl_add_u32 v{t+5}, v{t+5}, 5, v{t+4}
            v_add_u32 v{V_CX+tt}, s34, v{t+5}
            '''
        o += f'''
        v_bfe_u32 v{t+5}, v255, 3, 1
        v_lshrrev_b32 v{t+3}, 1, v{t+3}
        v_or_b32 v{t+5}, v{t+5}, v{t+3}             ; f
        v_lshl_add_u32 v{t+4}, v{t+1}, 7, v{t+4}
        '''
        for j in range(4):
            o += f'''v_xor_b32 v{t+6}, {j}, v{t+5}
            v_lshl_add_u32 v{V_PR+j}, v{t+6}, 5, v{t+4}
            '''
        o += f'''v_xor_b32 v{t+6}, s{S_WAVE}, v{t+5}
        v_lshl_add_u32 v{t+6}, v{t+6}, 5, v{t+4}
        '''
        for e in range(6):
            if 4 * (e >> 1) < npan: o += f'v_add_u32 v{V_CA[e]}, {(e >> 1) * 4096 + 512 * (e & 1)}, v{t+6}\n'
        o += f'''s_lshr_b32 s34, s83, 2
        s_lshl_b32 s34, s34, 12
        s_add_u32 s35, s34, 512
        s_cmp_ge_u32 s83, {npan}|s_cbranch_scc1 {self.name}_{typ}_win|v_add_u32 v{V_CX}, s34, v{t+6}|v_add_u32 v{V_CX+1}, s35, v{t+6}|{self.name}_{typ}_win:
        '''
        o += f'''
        v_and_b32 v{t+5}, 15, v255
        v_lshrrev_b32 v{t+6}, 1, v{t+5}
        v_xor_b32 v{t+6}, v{t+6}, v{t}
        v_lshlrev_b32 v{t+6}, 4, v{t+6}
        v_lshl_add_u32 v{V_XB}, v{t+5}, 7, v{t+6}
        v_xor_b32 v{V_XB+1}, 64, v{V_XB}
        v_add_u32 v{V_XR}, s{S_XBEG}, v{V_XB}
        v_add_u32 v{V_XR+1}, s{S_XBEG}, v{V_XB+1}
        v_mov_b32 v{t+5}, 0x3f803f80
        '''
        for r in range(4): o += f'v_accvgpr_write_b32 a{A_ONE+r}, v{t+5}\n'
        for r in list(range(16)) + [20, 21, 22, 23]: o += f'v_accvgpr_write_b32 a{A_CS+r}, 0\n'
        o += f'v_and_b32 v{t+6}, 7, v255\nv_lshlrev_b32 v{t+6}, 5, v{t+6}\nv_mov_b32 v{t+7}, 32\n'
        o += f'''
        s_lshl_b32 s34, s2, 2
        s_add_u32 s34, s34, s{S_WAVE}
        s_lshl_b32 s80, s34, 13
        s_mul_i32 s81, s34, {28*128}
        s_lshl_b32 s82, s34, 11
        '''
        if self.RD > 4:
            for j in range(12): o += f'v_add_u32 v{V_PR2+j}, {4*L_WS}, v{V_PR+j}\n'
        return o
    def mainloop(self, typ):
        k = self.k; RD = self.RD; q = Q(); ops = []
        for n in range(4): ops.append(('vm', f'buffer_load_dwordx4 v[{4*n}:{4*n+3}], v20, s[{S_X}:{S_X+3}], s55 offen offset:{16*n}', 'sx'))
        G = []
        for u in range(RD - 1):
            g = []
            for s in range(4):
                g += [self.wdma(typ, u, s)] + [self.xdma(u, n, S_XBEG, u * 8192) for n in ([2 * s, 2 * s + 1] if u < 2 else [s])]
            g[-1] = g[-1] + self.incs() + ([('i', f's_add_u32 s{S_XO}, s{S_XO}, 128')] if u < 2 else [])
            G.append(g)
        def weave(dm, text):
            L = [x.strip().replace('|', '\n') for x in text.split('\n') if x.strip() and not x.strip().startswith(';')]
            o = []; n = len(dm)
            for i, d in enumerate(dm):
                part = L[i * len(L) // n:(i + 1) * len(L) // n]
                o += [d[0], ('i', 's_nop 0')] + d[1:] + [('i', x) for x in part]
            return o
        zero = lambda a, b: ''.join(f'v_mov_b32 v{r}, 0\n' for r in range(a, b))
        sa, sb = self.rowstats(typ)
        ops += weave(G[0] + G[1], self.setup2(typ) + zero(24, 208))
        ops.append(('wv', ['sx']))
        ops += weave(G[2], sa)
        if self.opt.get('pf0', 0):
            ops.append(('i', f'''s_lshl_b32 s34, s2, 2
            s_add_u32 s34, s34, s{S_WAVE}
            s_mul_i32 s35, s34, 7168
            s_mul_i32 s34, s34, 6144
            v_lshlrev_b32 v22, 7, v255
            v_min_u32 v23, {47*128}, v22
            v_min_u32 v22, {55*128}, v22'''))
            ops.append(('vm', f'buffer_load_dword v{V_T+8}, v23, s[{S_WQ}:{S_WQ+3}], s34 offen', 'pf'))
            ops.append(('vm', f'buffer_load_dword v{V_T+8}, v22, s[{S_WW}:{S_WW+3}], s35 offen', 'pf'))
        ops.append(('i', sb + zero(0, 24)))
        ops += [('wv', [('Wd', 0), ('Xd', 0)]), ('i', 's_barrier')]
        for rb in range(4): ops.append(self.xread(0, rb))
        for j in range(4): ops += self.wread(typ, 0, j)
        t, _ = resolve(ops, q)
        k('\n'.join(t))
        if self.opt.get('stamp'):
            stamp(k, self.opt, 1, S_WS, V_T); q.v.append('st'); q.l = []
        nit = NSUB // RD
        k(f's_mov_b32 s{S_IT}, {nit - 1}')
        lab = k.label('loop')
        body = lambda it: sum([self.substep(typ, RD * it + x) for x in range(RD)], [])
        t = loop_resolve(body, range(nit - 1), q)
        k(f'.p2align 4\n{lab}:')
        k('\n'.join(t))
        k(f's_cmp_eq_u32 s{S_IT}, s56\ns_cbranch_scc1 {self.name}_{typ}_sig\n{self.name}_{typ}_sigd:')
        k(f's_sub_u32 s{S_IT}, s{S_IT}, 1\ns_cmp_lg_u32 s{S_IT}, 0\ns_cbranch_scc1 {lab}')
        t, _ = resolve(body(nit - 1), q)
        k('\n'.join(t))
        k(f'''{self.name}_{typ}_epi:
        s_nop 4
        s_mov_b32 exec_lo, 0x10001
        s_mov_b32 exec_hi, 0x10001
        ds_write_b128 v{V_XD}, a[{A_CS+12}:{A_CS+15}]
        s_mov_b64 exec, -1
        s_waitcnt lgkmcnt(0)
        s_barrier''')
        stamp(k, self.opt, 2, S_WS, V_T)
    def outline(self, typ):
        nm = f'{self.name}_{typ}'
        st = self.opt.get('pfk', 0)
        pfk = f'''s_sub_u32 s34, 7, s56
        s_lshr_b32 s34, s34, {st - 1}
        s_add_u32 s34, s34, 1
        s_lshl_b32 s34, s34, 8
        s_add_u32 s34, s34, s2
        s_mul_i32 s35, s34, 7168
        s_mul_i32 s34, s34, 6144
        v_lshlrev_b32 v{V_CL}, 7, v255
        v_min_u32 v{V_CL+1}, {55*128}, v{V_CL}
        v_min_u32 v{V_CL}, {47*128}, v{V_CL}
        buffer_load_dword v{V_T+8}, v{V_CL}, s[{S_WQ}:{S_WQ+3}], s34 offen
        buffer_load_dword v{V_T+8}, v{V_CL+1}, s[{S_WW}:{S_WW+3}], s35 offen
        s_sub_u32 s56, s56, {st}
        s_cmp_lt_u32 s56, {7 - 2 * st}
        s_cselect_b32 s56, 2, s56''' if st else 's_mov_b32 s56, 2'
        self.k(f'''{nm}_sig:
        s_cmp_eq_u32 s56, 2
        s_cbranch_scc0 {nm}_sig1
        buffer_load_dword v{V_T+7}, v{V_T+6}, s[{S_DBG}:{S_DBG+3}], 0 offen sc1
        s_branch {nm}_sigd
        {nm}_sig1:
        s_cmp_lg_u32 s56, 7
        s_cbranch_scc1 {nm}_sig2
        v_mov_b32 v{V_T}, 1
        s_mov_b64 exec, 1
        buffer_atomic_add v{V_T}, off, s[{S_DBG}:{S_DBG+3}], s{S_CNT} sc1
        s_mov_b64 exec, -1
        {nm}_sig2:
        {pfk}
        s_branch {nm}_sigd
        {nm}_spin:
        s_mov_b32 s35, 0x40000
        {nm}_spin1:
        buffer_load_dword v{V_T+7}, v{V_T+6}, s[{S_DBG}:{S_DBG+3}], 0 offen sc1
        s_waitcnt vmcnt(0)
        v_cmp_gt_u32 vcc, 32, v{V_T+7}
        s_sub_u32 s35, s35, 1
        s_cbranch_scc1 {nm}_spun
        s_cbranch_vccnz {nm}_spin1
        s_branch {nm}_spun
        {nm}_cx:
        s_mov_b32 s35, 0x40000
        {nm}_cx1:
        buffer_load_dwordx4 v[{V_CL}:{V_CL+3}], v{V_T+6}, s[{S_WS}:{S_WS+3}], s87 offen sc1
        s_waitcnt vmcnt(0)
        v_max3_u32 v{V_XD+1}, v{V_CL}, v{V_CL+1}, v{V_CL+2}
        v_max_u32 v{V_XD+1}, v{V_XD+1}, v{V_CL+3}
        v_cmp_eq_u32 vcc, -1, v{V_XD+1}
        s_sub_u32 s35, s35, 1
        s_cbranch_scc1 {nm}_cxd
        s_cbranch_vccnz {nm}_cx1
        s_branch {nm}_cxd''')
    def rowstats(self, typ):
        class B:
            t = ''
            def __call__(s, x): s.t += x + '\n'
        k = B(); nm = f'{self.name}_{typ}'
        k('v_mov_b32 v21, 0x3f803f80')
        for n in range(16):
            a, b = 16 + (n & 1), 18 + (n & 1)
            k(f'v_dot2_f32_bf16 v{a}, v{n}, v21, {"v%d" % a if n > 1 else 0}\nv_dot2_f32_bf16 v{b}, v{n}, v{n}, {"v%d" % b if n > 1 else 0}')
        k(f'''v_mov_b32 v0, -1
        v_mov_b32 v1, -1
        v_and_b32 v8, 48, v255
        v_mov_b32 v2, -1
        v_mov_b32 v3, -1
        v_mov_b32 v4, 0
        v_add_f32 v16, v16, v17
        v_add_f32 v17, v18, v19
        v_lshlrev_b32 v5, 3, v255
        v_lshlrev_b32 v6, 2, v255''')
        for r in (8, 4, 2, 1):
            k(f'v_add_f32_dpp v16, v16, v16 row_ror:{r} row_mask:0xf bank_mask:0xf\nv_add_f32_dpp v17, v17, v17 row_ror:{r} row_mask:0xf bank_mask:0xf\ns_nop 0')
        k(f'''v_mov_b32 v18, v16
        v_mov_b32 v19, v17
        v_lshrrev_b32 v7, 5, v255
        v_lshlrev_b32 v7, 3, v7
        v_permlane16_swap_b32 v18, v16
        v_permlane16_swap_b32 v19, v17
        v_add_f32 v16, v16, v18
        v_add_f32 v17, v17, v19''')
        ln_finish(k, 16, 17, 1024, 18)
        k(f'''v_sub_f32 v18, 0, v16
        v_mov_b32 v16, v17
        v_mov_b32 v17, v18''')
        ta = k.t; k.t = ''
        k(f'''s_mov_b32 exec_lo, 1
        s_mov_b32 exec_hi, 1
        buffer_store_dwordx2 v[16:17], v7, s[{S_WS}:{S_WS+3}], s57 offen sc1
        s_mov_b64 exec, s[84:85]
        buffer_store_dwordx4 v[0:3], v8, s[{S_WS}:{S_WS+3}], s86 offen sc1
        s_mov_b64 exec, -1
        s_cmp_lt_u32 s{S_P}, 8
        s_cbranch_scc1 {nm}_nost
        buffer_store_dwordx2 v[2:3], v5, s[{S_WS}:{S_WS+3}], s58 offen sc1
        {nm}_nost:
        s_cmp_lg_u32 s{S_WAVE}, 0
        s_cbranch_scc1 {nm}_nofl
        buffer_store_dword v4, v6, s[{S_WS}:{S_WS+3}], s59 offen
        {nm}_nofl:
        s_nop 1''')
        return ta, k.t
    def prologue(self):
        k = self.k; name = self.name
        k(f'''
        s_cmp_ge_u32 s2, 256
        s_cbranch_scc1 {name}_end
        s_load_dwordx2 s[{S_X}:{S_X+1}], s[0:1], 0
        s_load_dwordx2 s[{S_DBG}:{S_DBG+1}], s[0:1], 72
        s_load_dwordx2 s[{S_WQ}:{S_WQ+1}], s[0:1], 8
        s_load_dwordx2 s[{S_WW}:{S_WW+1}], s[0:1], 32
        s_load_dwordx2 s[{S_WS}:{S_WS+1}], s[0:1], 80
        s_load_dwordx2 s[68:69], s[0:1], 40
        s_load_dwordx2 s[72:73], s[0:1], 56
        s_load_dwordx2 s[76:77], s[0:1], 16
        v_lshrrev_b32 v1, 6, v0
        v_and_b32 v255, 63, v0
        ''')
        if self.opt.get('t0', 1): start_touch(k, name + '_pc0', None, name + '_O', 5, va=248, vd=254)
        srd(k, 68, 0, 8 << 20); srd(k, 72, 0, 1792 * 2048); srd(k, 76, 0, 2 << 20)
        srd(k, S_X, 0, 4 << 20); srd(k, S_DBG, 0, 256)
        k(f'v_readfirstlane_b32 s{S_WAVE}, v1')
        cgmap = f'''s_bfe_u32 s34, s2, 0x20001
        s_lshl_b32 s34, s34, 2
        s_bfe_u32 s35, s2, 0x20005
        s_add_u32 s34, s34, s35
        s_bitcmp1_b32 s2, 7
        s_cselect_b32 s35, {16 if self.opt.get('map', 1) == 2 else 0}, {0 if self.opt.get('map', 1) == 2 else 16}
        s_add_u32 s{S_CG}, s34, s35''' if self.opt.get('map', 1) else f'''s_bfe_u32 s34, s2, 0x20001
        s_lshl_b32 s34, s34, 3
        s_lshr_b32 s35, s2, 5
        s_add_u32 s{S_CG}, s34, s35'''
        srd(k, S_WQ, 0, 1024 * 6144); srd(k, S_WW, 0, 1024 * 7168); srd(k, S_WS, 0, 0x10000000)
        k(f'''
        s_and_b32 s34, s2, 1
        s_lshl_b32 s34, s34, 2
        s_bfe_u32 s35, s2, 0x20003
        s_add_u32 s{S_RG}, s34, s35
        {cgmap}
        s_lshr_b32 s{S_P}, s{S_CG}, 1
        s_lshl_b32 s{S_WB}, s{S_WAVE}, 10
        s_mov_b32 s{S_XO}, 0
        s_mov_b32 s{S_QO}, 0
        s_mov_b32 s{S_WO}, 0
        s_lshl_b32 s34, s{S_RG}, 19
        s_lshl_b32 s35, s{S_WAVE}, 17
        s_add_u32 s34, s34, s35
        v_lshrrev_b32 v1, 4, v255
        v_and_b32 v2, 7, v255
        v_xor_b32 v1, v1, v2
        v_lshl_add_u32 v1, v1, 4, s34
        v_lshrrev_b32 v2, 3, v255
        v_lshl_add_u32 v{V_XD}, v2, 11, v1
        v_xor_b32 v1, 64, v{V_XD}
        v_add_u32 v{V_XD+1}, 16384, v1
        v_lshlrev_b32 v20, 6, v255
        s_mul_i32 s{S_XBEG}, s{S_WAVE}, 24576
        s_add_u32 s{S_XBEG}, s{S_XBEG}, {self.L_X}
        s_add_u32 s{S_XEND}, s{S_XBEG}, 24576
        s_add_u32 s{S_XW}, s{S_XBEG}, 16384
        s_mov_b32 s{S_XR}, s{S_XBEG}
        s_lshl_b32 s{S_CNT}, s{S_RG}, 5
        s_lshl_b32 s34, s{S_RG}, 8
        s_lshl_b32 s35, s{S_WAVE}, 6
        s_add_u32 s35, s34, s35
        s_lshl_b32 s35, s35, 3
        s_add_u32 s{S_RSO}, s35, {WS_RS}
        s_and_b32 s36, s{S_CG}, 15
        s_lshl_b32 s36, s36, 14
        s_add_u32 s58, s35, s36
        s_add_u32 s58, s58, {WS_ST}
        s_lshl_b32 s35, s{S_CG}, 3
        s_add_u32 s34, s34, s35
        s_lshl_b32 s35, s{S_WAVE}, 1
        s_add_u32 s34, s34, s35
        s_lshl_b32 s55, s34, 11
        s_lshl_b32 s57, s34, 3
        s_add_u32 s57, s57, {WS_RS}
        s_lshl_b32 s59, s2, 8
        s_add_u32 s59, s59, {WS_FLAG}
        s_lshl_b32 s83, s{S_RG}, 2
        s_add_u32 s83, s83, s{S_WAVE}
        s_cmp_le_u32 s83, 12
        s_cselect_b32 s84, 0x10001, 0
        s_mov_b32 s85, s84
        s_min_u32 s83, s83, 12
        s_lshl_b32 s87, s{S_CG}, 10
        s_add_u32 s87, s87, {WS_CX}
        s_lshl_b32 s86, s83, 6
        s_add_u32 s86, s86, s87
        s_cmp_eq_u32 s{S_WAVE}, 0
        s_cselect_b32 s92, -1, 0
        s_cselect_b32 s93, -1, 0
        s_cselect_b32 s56, {NSUB // 4 - 1}, -1
        ''')
        for i in range(2, 8): k(f'v_add_u32 v{V_XD+i}, {(i >> 1)*32768}, v{V_XD + (i & 1)}')
    def build(self):
        from k1epi import epilogue
        k = self.k; name = self.name
        self.prologue()
        k(f's_bitcmp1_b32 s{S_CG}, 0\ns_cbranch_scc1 {name}_O')
        for typ in 'EO':
            if typ == 'O': k(f'{name}_O:')
            self.setup(typ)
            k('s_waitcnt lgkmcnt(0)')
            stamp(k, self.opt, 0, S_WS, V_T)
            if self.opt.get('stamp'): k('s_waitcnt vmcnt(0)')
            self.mainloop(typ)
            epilogue(self, typ)
            stamp(k, self.opt, 6, S_WS, V_T)
            k('s_endpgm')
            self.outline(typ)
        k(f'{name}_end:\ns_endpgm')
        return k
```
